```python
import torch

def _softmax(x, axis=-1):
    return torch.softmax(x, dim=axis)
def _gelu(x):
    return torch.nn.functional.gelu(x, approximate="tanh")
def _silu(x):
    return torch.nn.functional.silu(x)
def _sigmoid(x):
    return torch.sigmoid(x)
def _layernorm(x, axis=-1, eps=1e-5):
    m = x.mean(dim=axis, keepdim=True)
    v = x.var(dim=axis, keepdim=True, unbiased=False)
    return (x - m) / torch.sqrt(v + eps)
def _scatter_add(tgt, idx, src, axis=0):
    return tgt.clone().index_add_(axis, idx, src)
def _segment_sum(src, seg, n):
    out = torch.zeros((n,) + src.shape[1:], dtype=src.dtype)
    return out.index_add_(0, seg, src)
def _pad(x, pw):
    flat = tuple(v for pair in reversed(pw) for v in pair)
    return torch.nn.functional.pad(x, flat)

kernel_name = 'standalone__sliding_block_cached__sampling'

def setup_inputs():

    _w = (lambda a: (lambda t: t.to(torch.bfloat16) if t.is_floating_point() else t)(torch.as_tensor(a)))
    B, Sq, D = 32, 32, 512
    Hq, Hkv, Sk, Dh = 32, 8, 2048, 128
    assert Hq % Hkv == 0, (Hq, Hkv)
    return {
        "x": _w((lambda *s: torch.randn(*s, dtype=torch.bfloat16) * 0.8)(B, Sq, D)),
        "k_cache": _w((lambda *s: torch.randn(*s, dtype=torch.bfloat16) * 0.8)(B, Hkv, Sk, Dh)),
        "v_cache": _w((lambda *s: torch.randn(*s, dtype=torch.bfloat16) * 0.05)(B, Hkv, Sk, Dh)),
        "wq": _w((lambda *s: torch.randn(*s, dtype=torch.bfloat16) * 0.8)(D, Hq * Dh) * (D ** -0.5)),
        "wo": _w((lambda *s: torch.randn(*s, dtype=torch.bfloat16) * 0.05)(Hq * Dh, D) * ((Hq * Dh) ** -0.5)),
    }

def reference(x, k_cache, v_cache, wq, wo):
    B, Sq, D = x.shape
    Hq, Dh = 32, 128
    Hkv, Sk = k_cache.shape[1], k_cache.shape[2]
    W = min(4096, max(256, Sk // 4))
    rep = Hq // Hkv
    q = (lambda x, *d: x.permute(*d))((x @ wq).reshape(B, Sq, Hq, Dh), 0, 2, 1, 3)
    k = (lambda x, n, axis: torch.repeat_interleave(x, n, dim=axis))(k_cache[:, :, Sk - W:, :], rep, axis=1)
    v = (lambda x, n, axis: torch.repeat_interleave(x, n, dim=axis))(v_cache[:, :, Sk - W:, :], rep, axis=1)
    scores = torch.einsum("bhqd,bhkd->bhqk", q, k) * (Dh ** -0.5)
    p = _softmax(scores, axis=-1)
    o = torch.einsum("bhqk,bhkd->bhqd", p, v)
    return (lambda x, *d: x.permute(*d))(o, 0, 2, 1, 3).reshape(B, Sq, Hq * Dh) @ wo
```

```python
HEADER = """; Kernarg layout for this problem (64 bytes, ptrs only, base s[0:1]):
"""
KN = "standalone__sliding_block_cached__sampling_kernel"

class Asm:
    def __init__(self):
        self.lines = []
        self.nlabel = 0
    def __call__(self, s):
        for l in s.strip("\n").split("\n"):
            self.lines.append("    " + l.strip() if not l.strip().endswith(":") else l.strip())
    def raw(self, s):
        self.lines.append(s)
    def label(self, base="L"):
        self.nlabel += 1
        return f"{base}_{self.nlabel}"
    def text(self):
        return "\n".join(self.lines) + "\n"

def kernel_begin(a, name):
    a.raw(".text")
    a.raw(f".globl {name}")
    a.raw(".p2align 8")
    a.raw(f".type {name},@function")
    a.raw(f"{name}:")

def kernel_desc(name, vgpr=256, sgpr=102, accum=256):
    return f""".section .rodata,"a"
.p2align 6
.amdhsa_kernel {name}
  .amdhsa_next_free_vgpr {vgpr}
  .amdhsa_next_free_sgpr {sgpr}
  .amdhsa_accum_offset {accum}
  .amdhsa_group_segment_fixed_size 0
  .amdhsa_kernarg_size 64
  .amdhsa_user_sgpr_count 2
  .amdhsa_user_sgpr_kernarg_segment_ptr 1
  .amdhsa_system_sgpr_workgroup_id_x 1
.end_amdhsa_kernel
"""

def file_text(launches, body, descs, single=False):
    s = HEADER
    if single:
        n, g, b, l = launches[0]
        s += f"; @launch grid=({g[0]},{g[1]},{g[2]}) block=({b[0]},{b[1]},{b[2]}) lds={l}\n"
    else:
        for n, g, b, l in launches:
            s += f"; @launch kernel={n} grid=({g[0]},{g[1]},{g[2]}) block=({b[0]},{b[1]},{b[2]}) lds={l}\n"
    s += '.amdgcn_target "amdgcn-amd-amdhsa--gfx950"\n'
    s += body
    s += "".join(descs)
    return s

STAMP_OFF = 0x1F000000
def stamp_setup(a, nst, sbase=90):
    pass
```

```python
import re

REG_RE = re.compile(r'(?<![\w.])([vas])(?:(\d+)|\[(\d+):(\d+)\])(?![\w])')

def parse_regs(tok):
    out = []
    tok = tok.strip()
    for m in REG_RE.finditer(tok):
        f = m.group(1)
        if m.group(2) is not None:
            out.append((f, int(m.group(2))))
        else:
            out += [(f, i) for i in range(int(m.group(3)), int(m.group(4)) + 1)]
    if re.search(r'\bvcc\b', tok): out += [('s', 106), ('s', 107)]
    if re.search(r'\bvcc_lo\b', tok): out += [('s', 106)]
    if re.search(r'\bexec\b', tok): out += [('s', 126), ('s', 127)]
    if re.search(r'\bm0\b', tok): out += [('s', 124)]
    return out

TRANS = ("v_exp_f32", "v_log_f32", "v_rcp_f32", "v_rsq_f32", "v_sqrt_f32", "v_sin_f32", "v_cos_f32")

class Ins:
    __slots__ = ("text", "op", "kind", "dst", "src", "tag", "passes", "srcC", "srcAB", "comment")
    def __init__(self, text, tag=None):
        self.text = text.strip()
        self.tag = tag
        t = self.text.split(";")[0].strip()
        parts = t.split(None, 1)
        self.op = parts[0]
        ops = []
        if len(parts) > 1:
            cur = ""; d = 0
            for ch in parts[1]:
                if ch == "[": d += 1
                if ch == "]": d -= 1
                if ch == "," and d == 0:
                    ops.append(cur); cur = ""
                else:
                    cur += ch
            ops.append(cur)
        op = self.op
        self.passes = 0; self.srcC = []; self.srcAB = []
        R = [parse_regs(o) for o in ops]
        flat = lambda L: [x for l in L for x in l]
        if op.endswith(":"):
            self.kind = "label"; self.dst = []; self.src = []
        elif op.startswith("v_mfma"):
            self.kind = "mfma"; self.dst = R[0]; self.srcAB = R[1] + R[2]; self.srcC = R[3] if len(R) > 3 else []
            self.src = self.srcAB + self.srcC
            self.passes = 8 if "32x32x16" in op else 4 if "16x16x32" in op else None
            assert self.passes
        elif op.startswith("ds_read"):
            self.kind = "ds_read"; self.dst = R[0]; self.src = flat(R[1:])
        elif op.startswith("ds_write") or op.startswith("ds_add"):
            self.kind = "ds_write"; self.dst = []; self.src = flat(R)
        elif op.startswith("ds_bpermute") or op.startswith("ds_swizzle"):
            self.kind = "ds_read"; self.dst = R[0]; self.src = flat(R[1:])
        elif op.startswith("buffer_load") or op.startswith("global_load"):
            if re.search(r'\blds\b', t) or "_lds_" in op:
                self.kind = "dma"; self.dst = []; self.src = flat(R) + [('s', 124)]
            else:
                self.kind = "vload"; self.dst = R[0]; self.src = flat(R[1:])
        elif op.startswith("buffer_store") or op.startswith("global_store"):
            self.kind = "vstore"; self.dst = []; self.src = flat(R)
        elif op.startswith("buffer_atomic") or op.startswith("global_atomic"):
            self.kind = "vstore"; self.dst = []; self.src = flat(R)
            if re.search(r'\bsc0\b', t):
                self.kind = "vload"
                self.dst = R[0]
        elif op in ("buffer_wbl2", "buffer_inv"):
            self.kind = "vstore"; self.dst = []; self.src = []
        elif op.startswith("s_load") or op in ("s_memtime", "s_memrealtime"):
            self.kind = "smem"; self.dst = R[0]; self.src = flat(R[1:])
        elif op == "s_waitcnt":
            self.kind = "wait"; self.dst = []; self.src = []
        elif op == "s_nop":
            self.kind = "nop"; self.dst = []; self.src = []
        elif op == "s_barrier":
            self.kind = "barrier"; self.dst = []; self.src = []
        elif op.startswith("s_cbranch") or op in ("s_branch", "s_endpgm", "s_sleep", "s_setprio"):
            self.kind = "ctl"; self.dst = []; self.src = flat(R)
        elif op.startswith("s_cmp"):
            self.kind = "salu"; self.dst = []; self.src = flat(R)
        elif op.startswith("s_"):
            self.kind = "salu"; self.dst = R[0] if R else []; self.src = flat(R[1:])
        elif op.startswith("v_"):
            self.kind = "trans" if any(op.startswith(x) for x in TRANS) else "valu"
            self.dst = list(R[0]); self.src = flat(R[1:])
            if op.startswith("v_permlane16_swap") or op.startswith("v_permlane32_swap"):
                self.kind = "permswap"; self.dst = R[0] + R[1]; self.src = R[0] + R[1]
            elif op.startswith("v_fmac") or op.startswith("v_dot2c") or op.startswith("v_writelane"):
                self.src = self.src + R[0]
            elif op.startswith("v_cmp"):
                pass
            elif op.startswith("v_add_co") or op.startswith("v_sub_co") or op.startswith("v_addc_co") or op.startswith("v_subb_co"):
                self.dst = R[0] + R[1]; self.src = flat(R[2:])
            if op.startswith("v_cndmask") and len(R) == 3:
                self.src = self.src + [('s', 106), ('s', 107)]
            if "_dpp" in op or "row_" in t or "quad_perm" in t:
                self.kind = "dpp"
        else:
            raise ValueError("unknown op " + self.text)

class KB:
    def __init__(self):
        self.ins = []
        self.notes = []
    def __call__(self, text, tag=None):
        for l in text.strip("\n").split("\n"):
            l = l.strip()
            if not l or l.startswith(";"):
                if l: self.ins.append(("raw", "    " + l))
                continue
            self.ins.append(("ins", Ins(l, tag)))
    def label(self, name):
        self.ins.append(("label", name))
    def raw(self, s):
        self.ins.append(("raw", s))
    def comment(self, s):
        self.ins.append(("raw", "    ; " + s))
    def wait_vm(self, tag):
        self.ins.append(("wait_vm", tag))
    def wait_vm_all(self):
        self.ins.append(("wait_vm", None))
    def wait_lgkm_all(self):
        self.ins.append(("wait_lgkm", None))
    def need(self, regs):
        self.ins.append(("need", parse_regs(regs)))
    def reset_state(self):
        self.ins.append(("reset", None))

    def finish(self, verbose=False):
        out = []
        vm_q = []
        lg_q = []
        smem_out = False
        pend = {}
        lastw = {}
        lastCread = {}
        lastStore = {}
        state = 0
        stats = dict(nops=0, waits=0, n=0)
        def emit(text, states=1):
            nonlocal state
            out.append("    " + text)
            state += states
        def do_wait(vm=None, lg=None):
            parts = []
            if vm is not None:
                n = min(vm, 63)
                parts.append(f"vmcnt({n})")
                while len(vm_q) > n:
                    o = vm_q.pop(0)
                    for r in o["dst"]:
                        if pend.get(r, (None, None))[1] is o: del pend[r]
            if lg is not None:
                n = min(lg, 15)
                parts.append(f"lgkmcnt({n})")
                while len(lg_q) > n:
                    o = lg_q.pop(0)
                    for r in o["dst"]:
                        if pend.get(r, (None, None))[1] is o: del pend[r]
            if parts:
                emit("s_waitcnt " + " ".join(parts)); stats["waits"] += 1
        def wait_for_regs(regs):
            vm = None; lg = None
            for r in regs:
                if r in pend:
                    c, o = pend[r]
                    if c == "vm":
                        k = len(vm_q) - 1 - vm_q.index(o)
                        vm = k if vm is None else min(vm, k)
                    else:
                        k = len(lg_q) - 1 - lg_q.index(o)
                        lg = k if lg is None else min(lg, k)
            if vm is not None or lg is not None:
                do_wait(vm, lg)
        for kind, item in self.ins:
            if kind == "raw":
                out.append(item); continue
            if kind == "label":
                out.append(item + ":"); continue
            if kind == "reset":
                assert not vm_q and not lg_q, "reset with outstanding ops"
                continue
            if kind == "wait_vm":
                if item is None:
                    if vm_q: do_wait(vm=0)
                else:
                    idx = [i for i, o in enumerate(vm_q) if o["tag"] == item]
                    if idx: do_wait(vm=len(vm_q) - 1 - idx[-1])
                continue
            if kind == "wait_lgkm":
                if lg_q or smem_out:
                    emit("s_waitcnt lgkmcnt(0)"); stats["waits"] += 1
                    for o in lg_q:
                        for r in o["dst"]:
                            if pend.get(r, (None, None))[1] is o: del pend[r]
                    lg_q.clear(); smem_out = False
                    for r in [r for r, (c, o) in pend.items() if c == "sm"]: del pend[r]
                continue
            if kind == "need":
                wait_for_regs(item); continue
            I = item
            stats["n"] += 1
            if I.kind == "wait":
                m = re.search(r'vmcnt\((\d+)\)', I.text); v = int(m.group(1)) if m else None
                m = re.search(r'lgkmcnt\((\d+)\)', I.text); l = int(m.group(1)) if m else None
                if l == 0:
                    smem_out = False
                    for r in [r for r, (c, o) in pend.items() if c == "sm"]: del pend[r]
                do_wait(v, l); continue
            touched = I.dst + I.src
            if any(r in pend and pend[r][0] == "sm" for r in touched):
                emit("s_waitcnt lgkmcnt(0)"); stats["waits"] += 1
                for o in lg_q:
                    for r in o["dst"]:
                        if pend.get(r, (None, None))[1] is o: del pend[r]
                lg_q.clear(); smem_out = False
                for r in [r for r, (c, o) in pend.items() if c == "sm"]: del pend[r]
            wait_for_regs(touched)
            need = 0
            def req(prod_state, n):
                nonlocal need
                d = state - prod_state - 1
                if n - d > need: need = n - d
            isvalu = I.kind in ("valu", "trans", "permswap", "dpp")
            for r in I.src:
                w = lastw.get(r)
                if w is None: continue
                wk, ws, wp, wd = w
                if wk in ("valu", "trans", "permswap", "dpp") and r[0] in "va":
                    if I.kind == "mfma": req(ws, 2)
                    if I.kind == "permswap": req(ws, 2)
                    if I.kind == "dpp": req(ws, 2)
                    if I.op.startswith("v_readfirstlane") or I.op.startswith("v_readlane"): req(ws, 1)
                    if wk == "trans" and isvalu and I.kind != "trans": req(ws, 1)
                    if wk == "trans" and I.kind == "trans": req(ws, 1)
                if wk in ("valu", "trans", "permswap", "dpp") and r[0] == "s":
                    if isvalu: req(ws, 2)
                    if I.kind in ("vload", "vstore", "dma"): req(ws, 5)
                    if I.kind in ("salu", "ctl", "smem"): req(ws, 4)
                if wk == "salu" and r == ('s', 124) and I.kind == "dma": req(ws, 1)
                if wk == "mfma":
                    if I.kind == "mfma":
                        if r in I.srcC and I.srcC == wd and I.passes == wp and r not in I.srcAB:
                            pass
                        elif r in I.srcAB: req(ws, {4: 8, 8: 12}[wp])
                        else: req(ws, {4: 6, 8: 10}[wp])
                    else:
                        req(ws, {4: 8, 8: 12}[wp])
            for r in I.dst:
                w = lastw.get(r)
                if w is not None and w[0] == "mfma":
                    wk, ws, wp, wd = w
                    if I.kind == "mfma":
                        if not (I.dst == wd and I.passes == wp):
                            req(ws, {4: 6, 8: 10}[wp])
                    else:
                        req(ws, {4: 8, 8: 12}[wp])
                if r in lastCread and (isvalu or I.kind in ("vload", "ds_read")):
                    cs, cp = lastCread[r]; req(cs, {4: 3, 8: 7}[cp])
                if r in lastStore and isvalu:
                    req(lastStore[r], 2)
            if need > 0:
                stats["nops"] += need
                while need > 0:
                    k = min(need, 16)
                    emit(f"s_nop {k-1}", k); need -= k
            cur = state
            emit(I.text)
            for r in I.dst:
                lastw[r] = (I.kind, cur, I.passes, I.dst)
            if I.kind == "mfma":
                for r in I.srcC: lastCread[r] = (cur, I.passes)
            if I.kind == "vstore" and ("x4" in I.op or "x3" in I.op):
                for r in I.src: lastStore[r] = cur
            if I.kind in ("vload", "vstore", "dma"):
                o = dict(tag=I.tag, dst=I.dst if I.kind == "vload" else [])
                vm_q.append(o)
                for r in o["dst"]: pend[r] = ("vm", o)
                if len(vm_q) > 63:
                    pass
            elif I.kind in ("ds_read", "ds_write"):
                o = dict(tag=I.tag, dst=I.dst)
                lg_q.append(o)
                for r in o["dst"]: pend[r] = ("lg", o)
                assert not smem_out, "LDS op while SMEM outstanding: " + I.text
            elif I.kind == "smem":
                smem_out = True
                for r in I.dst: pend[r] = ("sm", None)
        self.stats = stats
        return "\n".join(out) + "\n"
```

```python
import sys, math, struct
from kb import KB
from asmlib import HEADER, KN, kernel_desc, STAMP_OFF

def f2u(x): return struct.unpack("<I", struct.pack("<f", x))[0]
CSCALE = f2u(math.log2(math.e) / math.sqrt(128.0))

def vr(b, n=1): return f"v{b}" if n == 1 else f"v[{b}:{b+n-1}]"
def ar(b, n=1): return f"a{b}" if n == 1 else f"a[{b}:{b+n-1}]"

SX, SK, SV, SWQ, SWO, SP = "s[8:11]", "s[12:15]", "s[16:19]", "s[20:23]", "s[24:27]", "s[28:31]"
S_B, S_HKV, S_W, S_ROT = "s36", "s37", "s38", "s39"
S_SELE, S_SELO, S_C = "s40", "s41", "s42"
S_W4K = "s43"
S_T0, S_T1, S_T2, S_T3 = "s44", "s45", "s46", "s47"
V_LANE = 1
V_KD = 2
V_VD = 6
V_OW = 7
V_KA = 8
V_VA = 16
V_W2 = 20
V_XB = 22
V_XT = 23
V_MC, V_L, V_AL, V_BM, V_T0, V_T1 = 24, 25, 26, 27, 28, 29
V_PO = 30
V_RAW = 32
V_S = 32
V_F = 128
V_O = 128
V_QD = 144
V_W1 = 208
V_P = 192
V_OD = 192
A_XB = 0
A_FB = 0
A_Q = 128
A_OB = 160
SLOT = 16384
XS = 8 * SLOT
OS = 8 * SLOT
KSLOT = {0: 0, 1: 1, 2: 2, 3: 3, 4: 8, 5: 9, 6: 0, 7: 1}
VSLOT = {0: 4, 1: 5, 2: 6, 3: 7, 4: 2, 5: 3, 6: 4, 7: 5}

class Cfg:
    kv_bursts = {1: 2, 4: 2, 7: 2, 10: 2, 12: 2}
    kvpol = " nt"
    stamps = False
    dump = None
    def __init__(self, **kw):
        for k, v in kw.items(): setattr(self, k, v)

def stamp(k, cfg, i):
    if cfg.stamps:
        k(f"s_memrealtime s[{60+2*i}:{61+2*i}]")
        k("s_waitcnt lgkmcnt(0)")

def srd(k, d, lo, hi, size):
    k(f"s_mov_b32 s{d}, {lo}")
    k(f"s_and_b32 s{d+1}, {hi}, 0xffff")
    k(f"s_mov_b32 s{d+2}, {size}")
    k(f"s_mov_b32 s{d+3}, 0x20000")

PRE_ORDER = [("K", 0), ("K", 1), ("V", 0), ("V", 1), ("K", 2), ("K", 3), ("V", 2), ("V", 3), ("K", 4), ("K", 5)]

def dma_chunk(k, cfg, kind, c, tag):
    slot = KSLOT[c] if kind == "K" else VSLOT[c]
    k(f"s_add_u32 m0, {S_W4K}, {slot*SLOT}")
    k(f"s_add_u32 {S_T3}, {S_W4K}, {c*SLOT}")
    for t in range(4):
        vo = vr(V_KD + t) if kind == "K" else vr(V_VD)
        sr = SK if kind == "K" else SV
        off = f" offset:{t*1024}" if t else ""
        k(f"buffer_load_dwordx4 {vo}, {sr}, {S_T3} offen{off}{cfg.kvpol} lds", tag=tag)

def w_loads(k, which, step, buf):
    k(f"s_add_u32 {S_T0}, {S_ROT}, {step}")
    k(f"s_and_b32 {S_T0}, {S_T0}, 15")
    k(f"s_lshl_b32 {S_T0}, {S_T0}, {18 if which == 1 else 15}")
    for j in range(8):
        d = vr(V_RAW + buf*32 + 4*j, 4)
        if which == 1:
            k(f"buffer_load_dwordx4 {d}, {vr(V_W1 + j)}, {SWQ}, {S_T0} offen", tag=f"w1_{step}")
        else:
            off = f" offset:{(j&3)*1024}" if j & 3 else ""
            k(f"buffer_load_dwordx4 {d}, {vr(V_W2 + (j >> 2))}, {SWO}, {S_T0} offen{off}", tag=f"w2_{step}")

def proj_step(k, buf, acc, bfrag, first, fbase):
    raw = V_RAW + buf*32
    def perms(i):
        f = fbase + (i & 3) * 4
        sel = S_SELO if i & 1 else S_SELE
        out = []
        for u in range(4):
            out.append(f"v_perm_b32 {vr(f+u)}, {vr(raw + 4*(2*u+1) + (i>>1))}, {vr(raw + 4*(2*u) + (i>>1))}, {sel}")
        return out
    k.need(vr(raw, 32))
    p = perms(0)
    for x in p: k(x)
    for i in range(8):
        nxt = perms(i+1) if i < 7 else []
        f = fbase + (i & 3) * 4
        for qh in range(2):
            d = vr(acc + (i*2+qh)*4, 4)
            c = "0" if first else d
            for x in nxt[2*qh:2*qh+2]: k(x)
            k(f"v_mfma_f32_16x16x32_bf16 {d}, {vr(f,4)}, {bfrag(qh)}, {c}")

def gen_k1(cfg, name):
    k = KB()
    k.raw(".text"); k.raw(f".globl {name}"); k.raw(".p2align 8"); k.raw(f".type {name},@function"); k.raw(f"{name}:")
    stamp(k, cfg, 0)
    k("s_cmp_ge_u32 s2, 256")
    k(f"s_cbranch_scc1 L_end_{name}")
    k("s_load_dwordx4 s[44:47], s[0:1], 0")
    k("s_load_dwordx4 s[48:51], s[0:1], 16")
    k("s_load_dwordx4 s[52:55], s[0:1], 32")
    k("s_load_dwordx2 s[56:57], s[0:1], 56")
    k(f"v_and_b32 {vr(V_LANE)}, 63, v0")
    k("v_lshrrev_b32 v2, 6, v0")
    k(f"v_readfirstlane_b32 {S_W}, v2")
    k(f"s_lshr_b32 {S_B}, s2, 3")
    k(f"s_and_b32 {S_HKV}, s2, 7")
    k(f"s_and_b32 {S_ROT}, {S_B}, 15")
    k(f"s_mov_b32 {S_SELE}, 0x05040100")
    k(f"s_mov_b32 {S_SELO}, 0x07060302")
    k(f"s_mov_b32 {S_C}, {CSCALE:#x}")
    k(f"s_lshl_b32 {S_W4K}, {S_W}, 12")
    k("s_waitcnt lgkmcnt(0)")
    k(f"s_lshl_b32 s58, {S_B}, 15")
    k("s_add_u32 s44, s44, s58"); k("s_addc_u32 s45, s45, 0")
    srd(k, 8, "s44", "s45", 32768)
    k("s_lshl_b32 s58, s2, 19"); k("s_add_u32 s58, s58, 393216")
    k("s_add_u32 s46, s46, s58"); k("s_addc_u32 s47, s47, 0")
    srd(k, 12, "s46", "s47", 131072)
    k("s_add_u32 s48, s48, s58"); k("s_addc_u32 s49, s49, 0")
    srd(k, 16, "s48", "s49", 131072)
    srd(k, 20, "s50", "s51", 4194304)
    k(f"s_lshl_b32 s58, {S_HKV}, 19")
    k("s_add_u32 s52, s52, s58"); k("s_addc_u32 s53, s53, 0")
    srd(k, 24, "s52", "s53", 524288)
    k("s_lshl_b32 s58, s2, 16")
    k("s_add_u32 s48, s56, s58"); k("s_addc_u32 s49, s57, 0")
    srd(k, 28, "s48", "s49", 65536)
    L = vr(V_LANE)
    T0, T1, T2, T3 = "v28", "v29", "v30", "v31"
    k(f"s_and_b32 {S_T0}, {S_W}, 1"); k(f"s_lshl_b32 {S_T0}, {S_T0}, 3")
    k(f"v_xor_b32 {T0}, {S_T0}, {L}")
    k(f"s_lshl_b32 {S_T1}, {S_W}, 13")
    for i in range(8):
        k(f"v_xor_b32 {vr(V_RAW+i)}, {i}, {T0}")
        k(f"v_lshlrev_b32 {vr(V_RAW+i)}, 4, {vr(V_RAW+i)}")
    for h in range(2):
        k(f"s_add_u32 m0, {S_T1}, {XS + h*4096}")
        k(f"s_add_u32 {S_T2}, {S_T1}, {h*4096}")
        for i in range(4):
            off = f" offset:{i*1024}" if i else ""
            k(f"buffer_load_dwordx4 {vr(V_RAW + 4*h + i)}, {SX}, {S_T2} offen{off} lds", tag="x")
    k(f"v_and_b32 {T0}, 15, {L}")
    k(f"v_lshrrev_b32 {T1}, 4, {L}")
    k(f"v_lshlrev_b32 {T2}, 16, {T1}")
    k(f"v_lshl_add_u32 {T2}, {T0}, 4, {T2}")
    k(f"s_lshl_b32 {S_T0}, {S_HKV}, 10"); k(f"s_lshl_b32 {S_T1}, {S_W}, 8"); k(f"s_add_u32 {S_T0}, {S_T0}, {S_T1}")
    k(f"v_add_u32 {vr(V_W1)}, {S_T0}, {T2}")
    for j in range(1, 8):
        k(f"v_add_u32 {vr(V_W1+j)}, {j*8192}, {vr(V_W1)}")
    for s in range(3):
        w_loads(k, 1, s, s)
    k(f"v_lshlrev_b32 {T2}, 13, {T1}")
    k(f"v_lshl_add_u32 {T2}, {T0}, 4, {T2}")
    k(f"v_add_u32 {vr(V_W2)}, {S_T1}, {T2}")
    k(f"v_add_u32 {vr(V_W2+1)}, 4096, {vr(V_W2)}")
    k(f"v_xor_b32 {T2}, {T0}, {T1}")
    k(f"v_lshlrev_b32 {T2}, 4, {T2}")
    k(f"v_lshl_add_u32 {vr(V_KD)}, {T1}, 8, {T2}")
    for t in range(1, 4):
        k(f"v_xor_b32 {vr(V_KD+t)}, {t << 6}, {vr(V_KD)}")
    k(f"v_lshlrev_b32 {T2}, 2, {T1}")
    k(f"v_xor_b32 {T2}, {T0}, {T2}")
    k(f"v_lshlrev_b32 {T2}, 4, {T2}")
    k(f"v_lshl_add_u32 {vr(V_VD)}, {T1}, 8, {T2}")
    k(f"v_lshlrev_b32 {vr(V_XB)}, 10, {T0}")
    k(f"v_lshrrev_b32 {T2}, 2, {T0}")
    k(f"v_lshl_add_u32 {vr(V_XB)}, {T2}, 6, {vr(V_XB)}")
    k(f"v_and_b32 {T2}, 3, {T0}")
    k(f"v_xor_b32 {T2}, {T2}, {T1}")
    k(f"v_lshl_add_u32 {vr(V_XB)}, {T2}, 4, {vr(V_XB)}")
    k(f"v_add_u32 {vr(V_XB)}, {XS}, {vr(V_XB)}")
    k(f"v_and_b32 {T2}, 31, {L}")
    k(f"v_lshrrev_b32 {T3}, 5, {L}")
    k(f"v_lshlrev_b32 {vr(V_KA)}, 3, {T3}")
    k(f"v_xor_b32 {vr(V_KA)}, {vr(V_KA)}, {T0}")
    k(f"v_lshlrev_b32 {vr(V_KA)}, 4, {vr(V_KA)}")
    k(f"v_lshl_add_u32 {vr(V_KA)}, {T2}, 8, {vr(V_KA)}")
    for s in range(1, 8):
        k(f"v_xor_b32 {vr(V_KA+s)}, {s << 4}, {vr(V_KA)}")
    k(f"v_lshlrev_b32 {vr(V_OW)}, 10, {T2}")
    k(f"v_lshl_add_u32 {vr(V_OW)}, {T3}, 3, {vr(V_OW)}")
    k(f"v_lshl_add_u32 {vr(V_OW)}, {T0}, 4, {vr(V_OW)}")
    k(f"s_lshl_b32 {S_T0}, {S_W}, 8"); k(f"s_add_u32 {S_T0}, {S_T0}, {OS}")
    k(f"v_add_u32 {vr(V_OW)}, {S_T0}, {vr(V_OW)}")
    k(f"v_lshrrev_b32 {T2}, 2, {T0}")
    k(f"v_lshl_add_u32 {vr(V_VA)}, {T3}, 2, {T2}")
    k(f"v_lshlrev_b32 {vr(V_VA)}, 8, {vr(V_VA)}")
    k(f"v_lshl_add_u32 {vr(V_VA)}, {T2}, 6, {vr(V_VA)}")
    k(f"v_and_b32 {T2}, 1, {T1}")
    k(f"v_lshl_add_u32 {vr(V_VA)}, {T2}, 5, {vr(V_VA)}")
    k(f"v_and_b32 {T2}, 2, {T0}")
    k(f"v_lshl_add_u32 {vr(V_VA)}, {T2}, 3, {vr(V_VA)}")
    k(f"v_and_b32 {T2}, 1, {T0}")
    k(f"v_lshl_add_u32 {vr(V_VA)}, {T2}, 3, {vr(V_VA)}")
    k(f"v_add_u32 {vr(V_VA)}, 65536, {vr(V_VA)}")
    for T in range(1, 4):
        k(f"v_xor_b32 {vr(V_VA+T)}, {T << 6}, {vr(V_VA)}")
    k(f"s_lshl_b32 {S_T0}, {S_W}, 14")
    k(f"v_lshlrev_b32 {vr(V_PO)}, 4, {L}")
    k(f"v_add_u32 {vr(V_PO)}, {S_T0}, {vr(V_PO)}")
    k.wait_vm("x")
    k("s_barrier")
    for j in range(16):
        k(f"s_add_u32 {S_T0}, {S_ROT}, {j}")
        k(f"s_and_b32 {S_T0}, {S_T0}, 15")
        k(f"s_lshl_b32 {S_T0}, {S_T0}, 6")
        k(f"v_xor_b32 {vr(V_XT)}, {S_T0}, {vr(V_XB)}")
        for qh in range(2):
            off = f" offset:{qh*16384}" if qh else ""
            k(f"ds_read_b128 {ar(A_XB + (2*j+qh)*4, 4)}, {vr(V_XT)}{off}")
    k.wait_lgkm_all()
    k("s_barrier")
    stamp(k, cfg, 1)
    pre = list(PRE_ORDER)
    for s in range(16):
        proj_step(k, s % 3, V_QD, lambda qh: ar(A_XB + (2*s+qh)*4, 4), s == 0, V_F)
        if s + 3 < 16:
            w_loads(k, 1, s + 3, s % 3)
        for _ in range(cfg.kv_bursts.get(s, 0)):
            kind, c = pre.pop(0)
            dma_chunk(k, cfg, kind, c, "kvpre")
    while pre:
        kind, c = pre.pop(0)
        dma_chunk(k, cfg, kind, c, "kvpre")
    stamp(k, cfg, 2)
    for r in range(4):
        X = V_RAW + 8*r; Y = X + 4
        for t in range(4):
            k(f"v_cvt_pk_bf16_f32 {vr(X+t)}, {vr(V_QD + ((2*t)*2+0)*4 + r)}, {vr(V_QD + ((2*t+1)*2+0)*4 + r)}")
            k(f"v_cvt_pk_bf16_f32 {vr(Y+t)}, {vr(V_QD + ((2*t)*2+1)*4 + r)}, {vr(V_QD + ((2*t+1)*2+1)*4 + r)}")
    for r in range(4):
        X = V_RAW + 8*r; Y = X + 4
        for t in range(4):
            k(f"v_permlane16_swap_b32 {vr(X+t)}, {vr(Y+t)}")
    for r in range(4):
        X = V_RAW + 8*r; Y = X + 4
        for t in range(4):
            k(f"v_accvgpr_write_b32 {ar(A_Q + 4*r + t)}, {vr(X+t)}")
            k(f"v_accvgpr_write_b32 {ar(A_Q + 4*(4+r) + t)}, {vr(Y+t)}")
    if cfg.dump == "q":
        for s in range(8):
            X = V_RAW + 8*(s & 3) + 4*(s >> 2)
            k(f"s_mov_b32 {S_T0}, {s*1024}")
            k(f"buffer_store_dwordx4 {vr(X,4)}, {vr(V_PO)}, {SP}, {S_T0} offen")
        k.wait_vm_all()
        k.label(f"L_end_{name}")
        k("s_endpgm")
        return k
    attention(k, cfg)
    if cfg.dump == "o":
        k.wait_lgkm_all()
        k("s_barrier")
        k(f"v_lshlrev_b32 {T0}, 4, {L}")
        k(f"s_lshl_b32 {S_T0}, {S_W}, 13")
        k(f"v_add_u32 {T0}, {S_T0}, {T0}")
        k(f"v_add_u32 {T1}, {OS}, {T0}")
        for i in range(8):
            k(f"ds_read_b128 {vr(V_RAW+4*i,4)}, {T1} offset:{i*1024}")
        for i in range(8):
            k(f"s_mov_b32 {S_T1}, {i*1024}")
            k(f"buffer_store_dwordx4 {vr(V_RAW+4*i,4)}, {T0}, {SP}, {S_T1} offen")
        k.wait_vm_all()
        k.label(f"L_end_{name}")
        k("s_endpgm")
        return k
    stamp(k, cfg, 4)
    def bread(step):
        k(f"s_add_u32 {S_T0}, {S_ROT}, {step}")
        k(f"s_and_b32 {S_T0}, {S_T0}, 15")
        k(f"s_lshl_b32 {S_T0}, {S_T0}, 6")
        k(f"v_xor_b32 {vr(V_XT)}, {S_T0}, {vr(V_XB)}")
        for qh in range(2):
            off = f" offset:{qh*16384}" if qh else ""
            k(f"ds_read_b128 {ar(A_OB + (step&1)*8 + qh*4, 4)}, {vr(V_XT)}{off}")
    k.wait_lgkm_all()
    k("s_barrier")
    bread(0)
    for s in range(16):
        if s + 1 < 16: bread(s + 1)
        proj_step(k, s % 3, V_OD, lambda qh: ar(A_OB + (s&1)*8 + qh*4, 4), s == 0, V_F)
        if s + 3 < 16:
            w_loads(k, 2, s + 3, s % 3)
    stamp(k, cfg, 5)
    for u in range(8):
        qh, r = u >> 2, u & 3
        tb = V_RAW + 8*u
        for i in range(8):
            k(f"v_mov_b32 {vr(tb+i)}, {vr(V_OD + (i*2+qh)*4 + r)}")
        k(f"s_mov_b32 {S_T0}, {u*2048}")
        k(f"buffer_store_dwordx4 {vr(tb,4)}, {vr(V_PO)}, {SP}, {S_T0} offen")
        k(f"buffer_store_dwordx4 {vr(tb+4,4)}, {vr(V_PO)}, {SP}, {S_T0} offen offset:1024")
    if cfg.stamps:
        k.wait_vm_all()
        stamp(k, cfg, 6)
        NST = 8
        k(f"s_cmp_lg_u32 {S_W}, 0")
        k(f"s_cbranch_scc1 L_end_{name}")
        k(f"s_mul_i32 s58, s2, {NST*8}")
        k(f"s_add_u32 s58, s58, {STAMP_OFF}")
        k("s_add_u32 s56, s56, s58"); k("s_addc_u32 s57, s57, 0")
        for i in range(NST):
            j = min(i, 6)
            k(f"v_mov_b32 v{32+2*i}, s{60+2*j}"); k(f"v_mov_b32 v{33+2*i}, s{61+2*j}")
        k("v_mov_b32 v3, 0")
        k(f"v_cmp_eq_u32 vcc, 0, {L}")
        k("s_and_saveexec_b64 s[58:59], vcc")
        for i in range(NST // 2):
            k(f"global_store_dwordx4 v3, v[{32+4*i}:{35+4*i}], s[56:57] offset:{16*i}")
    k.label(f"L_end_{name}")
    k("s_endpgm")
    return k

def attention(k, cfg):
    MC, Lr, AL, BM, T0, T1 = vr(V_MC), vr(V_L), vr(V_AL), vr(V_BM), vr(V_T0), vr(V_T1)
    Sb = lambda tau: V_S + (tau % 6) * 16
    Pb = lambda tau: V_P + (tau % 8) * 8
    units = []
    def qk_units(j):
        for t in range(4):
            tau = 4*j + t
            c = tau >> 1
            slot = KSLOT[c]
            base = (slot if slot < 4 else slot - 8) * SLOT + (tau & 1) * 8192
            for half in range(2):
                u = dict(kind="qk", j=j, tau=tau, half=half, reads=[], mf=[])
                for x in range(4):
                    sig = 4*half + x
                    u["reads"].append((lambda fb, x=x, sig=sig, base=base: f"ds_read_b128 {ar(fb+4*x,4)}, {vr(V_KA+sig)} offset:{base}"))
                    d = vr(Sb(tau), 16)
                    cc = "0" if sig == 0 else d
                    u["mf"].append((lambda fb, x=x, sig=sig, d=d, cc=cc: f"v_mfma_f32_32x32x16_bf16 {d}, {ar(fb+4*x,4)}, {ar(A_Q+4*sig,4)}, {cc}"))
                units.append(u)
    def pv_units(j):
        for T in range(4):
            for tp in range(2):
                u = dict(kind="pv", j=j, T=T, tp=tp, reads=[], mf=[])
                for x in range(4):
                    t = 2*tp + (x >> 1); uu = x & 1
                    tau = 4*j + t
                    c = tau >> 1
                    slot = VSLOT[c]
                    vbase = 4 if j < 2 else 2
                    off = (slot - vbase) * SLOT + ((tau & 1) * 32 + 16*uu) * 256
                    u["reads"].append((lambda fb, x=x, T=T, off=off: f"ds_read_b64_tr_b16 {ar(fb+4*x,2)}, {vr(V_VA+T)} offset:{off}"))
                    u["reads"].append((lambda fb, x=x, T=T, off=off: f"ds_read_b64_tr_b16 {ar(fb+4*x+2,2)}, {vr(V_VA+T)} offset:{off+2048}"))
                    d = vr(V_O + 16*T, 16)
                    cc = "0" if (j == 0 and tp == 0 and x == 0) else d
                    pf = vr(Pb(tau) + 4*uu, 4)
                    u["mf"].append((lambda fb, x=x, d=d, cc=cc, pf=pf: f"v_mfma_f32_32x32x16_bf16 {d}, {ar(fb+4*x,4)}, {pf}, {cc}"))
                units.append(u)
    qk_units(0)
    qk_units(1)
    pv_units(0); qk_units(2)
    pv_units(1); qk_units(3)
    pv_units(2)
    pv_units(3)
    NU = len(units)
    vq = []
    def V(text, mu, idn=None): vq.append((text, mu, idn))
    def qk_end_unit(j, t):
        base = {0: 0, 1: 8, 2: 24, 3: 40}[j]
        return base + 2*t + 1
    def maxs(j, t):
        tau = 4*j + t; s = Sb(tau)
        mu = qk_end_unit(j, t) + 1
        if t == 0:
            V(f"v_max_f32 {BM}, {vr(s)}, {vr(s+1)}", mu)
            rng = range(1, 8)
        else:
            rng = range(8)
        for i in rng:
            V(f"v_max3_f32 {BM}, {BM}, {vr(s+2*i)}, {vr(s+2*i+1)}", mu)
    def glue(j):
        mu = qk_end_unit(j, 3) + 1
        V(f"v_mov_b32 {T0}, {BM}", mu)
        V(f"v_permlane32_swap_b32 {BM}, {T0}", mu)
        V(f"v_max_f32 {BM}, {BM}, {T0}", mu)
        if j == 0:
            V(f"v_mul_f32 {MC}, {S_C}, {BM}", mu)
            V(f"v_mov_b32 {Lr}, 0", mu)
        else:
            V(f"v_mul_f32 {BM}, {S_C}, {BM}", mu)
            V(f"v_max_f32 {BM}, {MC}, {BM}", mu)
            V(f"v_sub_f32 {T0}, {MC}, {BM}", mu)
            V(f"v_exp_f32 {AL}, {T0}", mu)
            V(f"v_mov_b32 {MC}, {BM}", mu)
            V(f"v_mul_f32 {Lr}, {Lr}, {AL}", mu)
    def exps(j, t):
        tau = 4*j + t; s = Sb(tau); p = Pb(tau)
        for i in range(8):
            a_, b_ = vr(s+2*i), vr(s+2*i+1)
            V(f"v_fma_f32 {a_}, {a_}, {S_C}, -{MC}", 0)
            V(f"v_fma_f32 {b_}, {b_}, {S_C}, -{MC}", 0)
            V(f"v_exp_f32 {a_}, {a_}", 0)
            V(f"v_exp_f32 {b_}, {b_}", 0)
            V(f"v_add_f32 {Lr}, {Lr}, {a_}", 0)
            V(f"v_add_f32 {Lr}, {Lr}, {b_}", 0)
            V(f"v_cvt_pk_bf16_f32 {vr(p+i)}, {a_}, {b_}", 0, idn=(f"exp{tau}" if i == 7 else None))
    def rescale(j, mu):
        for i in range(64):
            V(f"v_mul_f32 {vr(V_O+i)}, {AL}, {vr(V_O+i)}", mu, idn=(f"resc{j}" if i == 63 else None))
    phases = []
    def phase(u0, u1, fn):
        i0 = len(vq); fn(); phases.append((u0, u1, i0, len(vq)))
    phase(0, 8, lambda: [maxs(0, t) for t in range(3)])
    def ph_it0():
        maxs(0, 3); glue(0)
        exps(0, 0); exps(0, 1); maxs(1, 0); exps(0, 2); maxs(1, 1); exps(0, 3); maxs(1, 2)
    phase(8, 16, ph_it0)
    def ph_it(j):
        def f():
            maxs(j, 3); glue(j)
            exps(j, 0); exps(j, 1); exps(j, 2)
            base = {1: 24, 2: 40}[j]
            maxs(j+1, 0); exps(j, 3); maxs(j+1, 1)
            rescale(j, base)
            maxs(j+1, 2)
        return f
    phase(16, 32, ph_it(1))
    phase(32, 48, ph_it(2))
    def ph_it3():
        maxs(3, 3); glue(3)
        for t in range(4): exps(3, t)
        rescale(3, 56)
    phase(48, 57, ph_it3)
    req = {}
    def qk_first(j, t): return {0: 0, 1: 8, 2: 24, 3: 40}[j] + 2*t
    for j in range(1, 4):
        for t in range(4):
            tau = 4*j + t
            if tau >= 6: req.setdefault(qk_first(j, t), []).append(f"exp{tau-6}")
    pv_first = {0: 16, 1: 32, 2: 48, 3: 56}
    for j in range(4):
        req.setdefault(pv_first[j], []).append(f"exp{4*j+3}")
        if j >= 1: req.setdefault(pv_first[j], []).append(f"resc{j}")
    bar = {7: ([], [("K", 6), ("K", 7)]), 15: ([], [("V", 4), ("V", 5)]), 23: ([], [("V", 6), ("V", 7)]),
           39: (["K6", "K7"], []), 47: (["V4", "V5"], []), 55: (["V6", "V7"], [])}
    NFB = 2
    fb = lambda n: A_FB + (n % NFB) * 16
    emitted = set(); qi = 0
    def emit_v(n_unit, count):
        nonlocal qi
        c = 0
        while c < count and qi < len(vq) and vq[qi][1] <= n_unit:
            t, mu, idn = vq[qi]; k(t); qi += 1; c += 1
            if idn: emitted.add(idn)
        return c
    def flush_until(idn, n_unit):
        nonlocal qi
        while idn not in emitted:
            t, mu, i2 = vq[qi]
            assert mu <= n_unit, (idn, t, mu, n_unit)
            k(t); qi += 1
            if i2: emitted.add(i2)
    k.wait_vm_all()
    k("s_barrier")
    stamp(k, cfg, 3)
    for rd in units[0]["reads"]: k(rd(fb(0)))
    for n, u in enumerate(units):
        if n == 23:
            pass
        if n in bar:
            tags, dm = bar[n]
            k.wait_lgkm_all()
            for tg in tags: k.wait_vm(tg)
            k("s_barrier")
            for kind, c in dm:
                dma_chunk(k, cfg, kind, c, f"{kind}{c}")
        for idn in req.get(n, []): flush_until(idn, n)
        k.need(ar(fb(n), 16))
        if n + 1 == 24:
            for s in range(8): k(f"v_add_u32 {vr(V_KA+s)}, {8*SLOT}, {vr(V_KA+s)}")
        if n + 1 == 40:
            for s in range(8): k(f"v_subrev_u32 {vr(V_KA+s)}, {8*SLOT}, {vr(V_KA+s)}")
        if n + 1 == 48:
            for T in range(4): k(f"v_subrev_u32 {vr(V_VA+T)}, {2*SLOT}, {vr(V_VA+T)}")
        nxt = units[n+1]["reads"] if n + 1 < NU else []
        ph = [p for p in phases if p[0] <= n < p[1]]
        if ph:
            u0, u1, i0, i1 = ph[0]
            rem = max(0, i1 - qi)
            budget = -(-rem // (u1 - n))
        else:
            budget = 0
        per = -(-budget // 4)
        if n == 56:
            w2 = [(s, s) for s in range(3)]
        for x in range(4):
            k(u["mf"][x](fb(n)))
            nr = len(nxt)
            lo = (nr * x) // 2 if x < 2 else nr
            hi = (nr * (x+1)) // 2 if x < 2 else nr
            for rd in nxt[lo:hi]: k(rd(fb(n+1)))
            emit_v(n, per)
            if n in (56, 57, 58) and x == 0:
                w_loads(k, 2, n - 56, n - 56)
        if n == 56:
            k(f"v_mov_b32 {T0}, {Lr}")
            k(f"v_permlane32_swap_b32 {Lr}, {T0}")
            k(f"v_add_f32 {Lr}, {Lr}, {T0}")
            k(f"v_rcp_f32 {AL}, {Lr}")
        if n >= 59 and n % 2 == 1:
            norm_tile(k, (n - 57) // 2 - 1)
    assert qi == len(vq), (qi, len(vq))
    norm_tile(k, 3)

def norm_tile(k, T):
    AL = vr(V_AL)
    o = V_O + 16*T
    for rq in range(4):
        for i in range(4):
            k(f"v_mul_f32 {vr(o+4*rq+i)}, {AL}, {vr(o+4*rq+i)}")
        k(f"v_cvt_pk_bf16_f32 {vr(o+4*rq)}, {vr(o+4*rq)}, {vr(o+4*rq+1)}")
        k(f"v_cvt_pk_bf16_f32 {vr(o+4*rq+1)}, {vr(o+4*rq+2)}, {vr(o+4*rq+3)}")
        k(f"v_xor_b32 {vr(V_T0)}, {(4*T+rq) << 4}, {vr(V_OW)}")
        k(f"ds_write_b64 {vr(V_T0)}, {vr(o+4*rq,2)}")

def gen_k2(cfg, name):
    k = KB()
    k.raw(f".globl {name}"); k.raw(".p2align 8"); k.raw(f".type {name},@function"); k.raw(f"{name}:")
    k("s_cmp_ge_u32 s2, 256")
    k(f"s_cbranch_scc1 L_end_{name}")
    k("s_load_dwordx2 s[4:5], s[0:1], 40")
    k("s_load_dwordx2 s[6:7], s[0:1], 56")
    k("v_and_b32 v1, 63, v0")
    k("v_lshrrev_b32 v2, 6, v0")
    k("v_readfirstlane_b32 s20, v2")
    k("s_lshr_b32 s21, s2, 3")
    k("s_and_b32 s22, s2, 7")
    k("s_waitcnt lgkmcnt(0)")
    k("s_lshl_b32 s23, s21, 19")
    k("s_add_u32 s6, s6, s23"); k("s_addc_u32 s7, s7, 0")
    srd(k, 8, "s6", "s7", 524288)
    k("s_lshl_b32 s23, s21, 15")
    k("s_add_u32 s4, s4, s23"); k("s_addc_u32 s5, s5, 0")
    srd(k, 12, "s4", "s5", 32768)
    k("s_lshr_b32 s24, s22, 1")
    k("s_and_b32 s25, s22, 1"); k("s_lshl_b32 s25, s25, 2"); k("s_add_u32 s25, s25, s20")
    k("s_lshl_b32 s26, s24, 14"); k("s_lshl_b32 s27, s25, 11"); k("s_add_u32 s26, s26, s27")
    k("v_lshlrev_b32 v3, 4, v1")
    k("v_add_u32 v3, s26, v3")
    for p in range(8):
        k(f"s_mov_b32 s28, {p*65536}")
        k(f"buffer_load_dwordx4 v[{8+8*p}:{11+8*p}], v3, s[8:11], s28 offen")
        k(f"buffer_load_dwordx4 v[{12+8*p}:{15+8*p}], v3, s[8:11], s28 offen offset:1024")
    k("s_lshr_b32 s29, s25, 2"); k("s_and_b32 s30, s25, 3")
    k("v_and_b32 v4, 15, v1"); k("v_lshrrev_b32 v5, 4, v1")
    k("v_lshlrev_b32 v4, 10, v4")
    k("v_lshl_add_u32 v4, v5, 6, v4")
    k("s_lshl_b32 s29, s29, 14"); k("s_lshl_b32 s31, s24, 8"); k("s_add_u32 s29, s29, s31")
    k("s_lshl_b32 s30, s30, 4"); k("s_add_u32 s29, s29, s30")
    k("v_add_u32 v4, s29, v4")
    for p in range(1, 8):
        for i in range(8):
            k(f"v_add_f32 v{8+i}, v{8+i}, v{8+8*p+i}")
    for t in range(4):
        k(f"v_cvt_pk_bf16_f32 v{80+t}, v{8+2*t}, v{9+2*t}")
    k("buffer_store_dwordx4 v[80:83], v4, s[12:15], 0 offen")
    k.label(f"L_end_{name}")
    k("s_endpgm")
    return k

def build(cfg, path):
    k1 = gen_k1(cfg, "k1_kernel")
    t1 = k1.finish()
    launches = [("k1_kernel", (256,1,1), (256,1,1), 163840)]
    descs = [kernel_desc("k1_kernel", vgpr=512, sgpr=96, accum=256)]
    body = t1
    if not cfg.dump:
        k2 = gen_k2(cfg, "k2_kernel")
        body += k2.finish()
        launches.append(("k2_kernel", (256,1,1), (256,1,1), 0))
        descs.append(kernel_desc("k2_kernel", vgpr=88, sgpr=48, accum=88))
    s = HEADER
    for n, g, b, l in launches:
        s += f"; @launch kernel={n} grid=({g[0]},{g[1]},{g[2]}) block=({b[0]},{b[1]},{b[2]}) lds={l}\n"
    s += '.amdgcn_target "amdgcn-amd-amdhsa--gfx950"\n' + body + "".join(descs)
    open(path, "w").write(s)
    print(path, k1.stats)

if __name__ == "__main__":
    build(Cfg(), "v1.s")
    build(Cfg(stamps=True), "v1_st.s")
    build(Cfg(dump="q"), "v1_dq.s")
    build(Cfg(dump="o"), "v1_do.s")
```

```python
import sys, math, struct
from kb import KB
from asmlib import HEADER, KN, kernel_desc, STAMP_OFF

def f2u(x): return struct.unpack("<I", struct.pack("<f", x))[0]
CSCALE = f2u(math.log2(math.e) / math.sqrt(128.0))
def vr(b, n=1): return f"v{b}" if n == 1 else f"v[{b}:{b+n-1}]"
def ar(b, n=1): return f"a{b}" if n == 1 else f"a[{b}:{b+n-1}]"

SX, SK, SV, SWQ, SWO, SP = "s[8:11]", "s[12:15]", "s[16:19]", "s[20:23]", "s[24:27]", "s[28:31]"
S_B, S_HKV, S_W, S_ROT = "s36", "s37", "s38", "s39"
S_SELE, S_SELO, S_C = "s40", "s41", "s42"
S_W4K = "s43"
S_T0, S_T1, S_T2, S_T3 = "s44", "s45", "s46", "s47"
S_W8K = "s48"
S_RF = "s49"
S_TYPE = "s35"
S_DBG = 92; S_WS = 94; S_OUT = 96; S_NON = 98
FLAG_OFF = 0x1000000
V_NON = 0
V_LANE = 1
V_KD = 2; V_VD = 6; V_L16 = 7
V_KA = 8
V_VA = [16, 216, 220]
V_WD = 20
V_XB = 22; V_XT = 23
V_L, V_AL, V_BM, V_T0, V_T1 = 24, 25, 26, 27, 28
V_PO = 29; V_OB = 30; V_T2 = 31
V_RAW = 32; V_S = 32
V_P = 96
V_F = 160; V_O = 128
V_QD = 176; V_W1 = 240
NRAW = 4
V_NM = 192
V_SG = 208; V_TE = 210
A_XB = 0; A_FB = 0; A_Q = 128
PK = [("a", 64), ("a", 96), ("a", 160), ("a", 192), ("a", 224), ("v", 224)]
def pkr(slot, off, n):
    f, b = PK[slot]
    return ar(b + off, n) if f == "a" else vr(b + off, n)
V_OD = 128
V_OF = 64
V_OBF = 112
V_WA = 32
SLOT = 16384
P0, P1, P2, P3, P4 = 0, 2*SLOT, 4*SLOT, 6*SLOT, 8*SLOT
XS = P4
import os
MAP2 = os.environ.get("MAP2") == "1"
if MAP2:
    KSLOT = {0: 0, 1: 1, 2: 2, 3: 4, 4: 6, 5: 8, 6: 2, 7: 4}
    VSLOT = {0: 3, 1: 5, 2: 7, 3: 9, 4: 3, 5: 5, 6: 7, 7: 6}
else:
    KSLOT = {0: 0, 1: 1, 2: 2, 3: 4, 4: 6, 5: 8, 6: 1, 7: 2}
    VSLOT = {0: 3, 1: 5, 2: 7, 3: 9, 4: 0, 5: 3, 6: 5, 7: 4}
ORDER = [("K", 0), ("K", 1), ("V", 0), ("K", 2), ("V", 1), ("K", 3), ("V", 2), ("K", 4), ("V", 3), ("K", 5), ("V", 4), ("K", 6), ("V", 5), ("K", 7), ("V", 6), ("V", 7)]
LATE = [("V", 4), ("K", 6), ("V", 5), ("K", 7), ("V", 6), ("V", 7)]
A_KV = 160
OEX = P2 if MAP2 else P1
VA0 = V_VA[0]
THR = 0x41000000

class Cfg:
    nA = 8
    nB = 4
    varsel = "b"
    kvpol = " nt"
    stamps = False
    stamp_set = None
    twice = False
    stampop = "s_memrealtime"
    D = 2
    stpol = " sc1"
    ldpol = " sc1"
    pbf16 = True
    sleep = 2
    dbgtime = False
    fullpre = False
    warm1 = True
    warm2 = True
    burst = False
    touch0 = False
    outpol = ""
    bdist = 3
    ospread = False
    chk = False
    codewarm = False
    bdelay = 0
    touch = False
    xpol = ""
    wflags = False
    warmA = True
    warmB = True
    bfirst = "x"
    prof2 = False
    tmask = 0xAA
    hmask = None
    bmask = 1
    bval = 1
    a_extra = False
    wpol = ""
    hack2 = None
    guard = "sum"
    sumthr = 0x44800000
    xpos = 6
    prof = False
    hack = None
    skew = 0
    warm2_step = 6
    kvplan = [("V", 1, 0), ("K", 3, 2), ("V", 2, 4), ("K", 4, 6), ("V", 3, 8), ("K", 5, 10), ("V", 4, 14), ("K", 6, 16),
              ("V", 5, 22), ("K", 7, 24), ("V", 6, 30), ("K", 99, 0), ("V", 7, 32)]
    w2plan = [("w2", 0, P3, 38), ("w2", 1, P4, 46), ("w2", 2, P0, 54)]
    dma_per_unit = 2
    lds_per_unit = 6
    thr = THR
    def __init__(self, **kw):
        for k, v in kw.items(): setattr(self, k, v)

def rstamp(k, cfg, i):
    if cfg.prof2: k.raw(f"    s_memrealtime s[{60+2*i}:{61+2*i}]")

def stamp(k, cfg, i):
    if cfg.prof2 and i not in (0,): return
    if cfg.stamps and (cfg.stamp_set is None or i in cfg.stamp_set):
        k(f"{cfg.stampop} s[{60+2*i}:{61+2*i}]")
        k("s_waitcnt lgkmcnt(0)")

def srd(k, d, lo, hi, size):
    k(f"s_mov_b32 s{d}, {lo}")
    k(f"s_and_b32 s{d+1}, {hi}, 0xffff")
    k(f"s_mov_b32 s{d+2}, {size}")
    k(f"s_mov_b32 s{d+3}, 0x20000")

def dma_chunk(k, cfg, kind, c, tag):
    slot = KSLOT[c] if kind == "K" else VSLOT[c]
    k(f"s_add_u32 m0, {S_W4K}, {slot*SLOT}")
    k(f"s_add_u32 {S_T3}, {S_W4K}, {c*SLOT}")
    for t in range(4):
        vo = vr(V_KD + t) if kind == "K" else vr(V_VD)
        sr = SK if kind == "K" else SV
        off = f" offset:{t*1024}" if t else ""
        k(f"buffer_load_dwordx4 {vo}, {sr}, {S_T3} offen{off}{cfg.kvpol} lds", tag=tag)

def w1_items(step, buf):
    out = [[f"s_add_u32 {S_T0}, {S_ROT}, {step}", f"s_and_b32 {S_T0}, {S_T0}, 15", f"s_lshl_b32 {S_T0}, {S_T0}, 18"]]
    for j in range(8):
        t = (f"buffer_load_dwordx4 {vr(V_RAW + buf*32 + 4*j, 4)}, {vr(V_W1 + j)}, {SWQ}, {S_T0} offen{POLW[0]}", f"w1_{step}")
        if j == 0: out[0].append(t)
        else: out.append([t])
    return out

def emit_items(k, items):
    for grp in items:
        for x in grp:
            if callable(x): x()
            elif isinstance(x, tuple): k(x[0], tag=x[1])
            else: k(x)

def w1_loads(k, step, buf):
    emit_items(k, w1_items(step, buf))

def kv_items(cfg, kind, c, tag, agpr=None):
    slot = KSLOT[c] if kind == "K" else VSLOT[c]
    out = []
    for t in range(4):
        g = []
        if t == 0:
            if agpr is None: g.append(f"s_add_u32 m0, {S_W4K}, {slot*SLOT}")
            g.append(f"s_add_u32 {S_T3}, {S_W4K}, {c*SLOT}")
        vo = vr(V_KD + t) if kind == "K" else vr(V_VD)
        sr = SK if kind == "K" else SV
        off = f" offset:{t*1024}" if t else ""
        if agpr is None:
            g.append((f"buffer_load_dwordx4 {vo}, {sr}, {S_T3} offen{off}{cfg.kvpol} lds", tag))
        else:
            g.append((f"buffer_load_dwordx4 {ar(agpr + 4*t, 4)}, {vo}, {sr}, {S_T3} offen{off}{cfg.kvpol}", tag))
        out.append(g)
    return out

def w2_dma(k, c, reg):
    k(f"s_add_u32 {S_T0}, {S_ROT}, {c}")
    k(f"s_and_b32 {S_T0}, {S_T0}, 15")
    k(f"s_lshl_b32 {S_T0}, {S_T0}, 15")
    for h in range(2):
        k(f"s_add_u32 m0, {S_W8K}, {reg + h*4096}")
        if h: k(f"s_add_u32 {S_T0}, {S_T0}, 16384")
        else: k("s_nop 0")
        for t in range(4):
            off = f" offset:{t*1024}" if t else ""
            k(f"buffer_load_dwordx4 {vr(V_WD+t)}, {SWO}, {S_T0} offen{off}{POLW[0]} lds", tag=f"w2_{c}")

HACK = [None]
POLW = ['']
def w2_items(c, reg):
    out = []
    for h in range(2):
        for t in range(4):
            g = []
            if h == 0 and t == 0:
                g += [f"s_add_u32 {S_T0}, {S_ROT}, {c}", f"s_and_b32 {S_T0}, {S_T0}, 15", f"s_lshl_b32 {S_T0}, {S_T0}, 15"]
            if t == 0:
                g.append(f"s_add_u32 m0, {S_W8K}, {reg + h*4096}")
                g.append(f"s_add_u32 {S_T0}, {S_T0}, 16384" if h else "s_nop 0")
            off = f" offset:{t*1024}" if t else ""
            g.append((f"buffer_load_dwordx4 {vr(V_WD+t)}, {SWO}, {S_T0} offen{off}{POLW[0]} lds", f"w2_{c}"))
            out.append(g)
    return out

def proj_step(k, buf, acc, bfrag, first, fbase, extra=()):
    raw = V_RAW + buf*32
    extra = list(extra)
    if HACK[0] == "nocompute":
        k.need(vr(raw, 32)); emit_items(k, extra); return
    if HACK[0] == "noloads":
        extra = [g for g in extra if not any(isinstance(x, tuple) and x[1].startswith("w1_") for x in g)]
    if HACK[0] == "noperm":
        k.need(vr(raw, 32))
        ne = len(extra); done = 0
        for i in range(8):
            for qh in range(2):
                d = vr(acc + (i*2+qh)*4, 4)
                k(f"v_mfma_f32_16x16x32_bf16 {d}, {vr(raw + 4*i, 4)}, {bfrag(qh)}, {'0' if first else d}")
                upto = (ne * (i*2+qh + 1)) // 16
                emit_items(k, extra[done:upto]); done = upto
        return
    def perms(i):
        f = fbase + (i & 3) * 4
        sel = S_SELO if i & 1 else S_SELE
        return [f"v_perm_b32 {vr(f+u)}, {vr(raw + 4*(2*u+1) + (i>>1))}, {vr(raw + 4*(2*u) + (i>>1))}, {sel}" for u in range(4)]
    k.need(vr(raw, 32))
    k.need(bfrag(0)); k.need(bfrag(1))
    for x in perms(0): k(x)
    ne = len(extra); done = 0
    for i in range(8):
        nxt = perms(i+1) if i < 7 else []
        f = fbase + (i & 3) * 4
        for qh in range(2):
            d = vr(acc + (i*2+qh)*4, 4)
            c = "0" if first else d
            for x in nxt[2*qh:2*qh+2]: k(x)
            k(f"v_mfma_f32_16x16x32_bf16 {d}, {vr(f,4)}, {bfrag(qh)}, {c}")
            slot = i*2 + qh
            upto = (ne * (slot + 1)) // 16
            emit_items(k, extra[done:upto]); done = upto

def gen(cfg, name):
    HACK[0] = cfg.hack
    POLW[0] = cfg.wpol
    k = KB()
    k.raw(".text"); k.raw(f".globl {name}"); k.raw(".p2align 8"); k.raw(f".type {name},@function"); k.raw(f"{name}:")
    stamp(k, cfg, 0)
    if cfg.dbgtime:
        k("s_memrealtime s[60:61]"); k("s_memtime s[62:63]")
    k("s_cmp_ge_u32 s2, 256")
    k(f"s_cbranch_scc1 L_end")
    k("s_load_dwordx4 s[44:47], s[0:1], 0")
    k("s_load_dwordx4 s[48:51], s[0:1], 16")
    k("s_load_dwordx4 s[52:55], s[0:1], 32")
    k("s_load_dwordx4 s[56:59], s[0:1], 48")
    k(f"s_memrealtime s[{S_NON}:{S_NON+1}]")
    L = vr(V_LANE)
    T0, T1, T2, T3 = "v28", "v29", "v30", "v31"
    k(f"v_and_b32 {L}, 63, v0")
    k("v_lshrrev_b32 v2, 6, v0")
    k(f"v_readfirstlane_b32 {S_W}, v2")
    k(f"s_lshr_b32 {S_B}, s2, 3")
    k(f"s_and_b32 {S_HKV}, s2, 7")
    k(f"s_and_b32 {S_ROT}, {S_B}, 15")
    k(f"s_and_b32 s33, {S_W}, 1"); k(f"s_lshl_b32 s33, s33, 3")
    k(f"v_xor_b32 {T0}, s33, {L}")
    for i in range(8):
        k(f"v_xor_b32 {vr(V_RAW+96+i)}, {i}, {T0}")
        k(f"v_lshlrev_b32 {vr(V_RAW+96+i)}, 4, {vr(V_RAW+96+i)}")
    k(f"v_and_b32 {T0}, 15, {L}")
    k(f"v_lshrrev_b32 {T1}, 4, {L}")
    k(f"v_xor_b32 {T2}, {T0}, {T1}")
    k(f"v_lshlrev_b32 {T2}, 4, {T2}")
    k(f"v_lshl_add_u32 {vr(V_KD)}, {T1}, 8, {T2}")
    for t in range(1, 4):
        k(f"v_xor_b32 {vr(V_KD+t)}, {t << 6}, {vr(V_KD)}")
    k(f"v_lshlrev_b32 {T2}, 2, {T1}")
    k(f"v_xor_b32 {T2}, {T0}, {T2}")
    k(f"v_lshlrev_b32 {T2}, 4, {T2}")
    k(f"v_lshl_add_u32 {vr(V_VD)}, {T1}, 8, {T2}")
    k(f"v_lshlrev_b32 {T2}, 16, {T1}")
    k(f"v_lshl_add_u32 {T2}, {T0}, 4, {T2}")
    k(f"s_lshl_b32 s34, {S_HKV}, 10"); k(f"s_lshl_b32 s35, {S_W}, 8"); k(f"s_add_u32 s34, s34, s35")
    k(f"v_add_u32 {vr(V_W1)}, s34, {T2}")
    for j in range(1, 8):
        k(f"v_add_u32 {vr(V_W1+j)}, {j*8192}, {vr(V_W1)}")
    k(f"s_lshl_b32 s34, {S_W}, 13")
    k(f"s_lshl_b32 {S_W4K}, {S_W}, 12")
    k(f"v_lshlrev_b32 {vr(V_L16)}, 4, {L}")
    if cfg.hmask is not None:
        k(f"s_lshr_b32 {S_TYPE}, {cfg.hmask}, {S_HKV}")
    else:
        k(f"s_and_b32 {S_TYPE}, {S_B}, 7")
        k(f"s_lshr_b32 {S_TYPE}, {cfg.tmask}, {S_TYPE}")
    k(f"s_and_b32 {S_TYPE}, {S_TYPE}, 1")
    k("s_lshl_b32 s33, s2, 19"); k("s_add_u32 s33, s33, 393216")
    k("s_waitcnt lgkmcnt(0)")
    k("s_add_u32 s46, s46, s33"); k("s_addc_u32 s47, s47, 0")
    srd(k, 12, "s46", "s47", 131072)
    k("s_add_u32 s48, s48, s33"); k("s_addc_u32 s49, s49, 0")
    srd(k, 16, "s48", "s49", 131072)
    if cfg.touch0:
        k(f"v_mov_b32 {T2}, 0")
        k(f"buffer_load_dword a149, {T2}, {SV}, 0 offen nt", tag="t0")
        k(f"buffer_load_dword a150, {T2}, {SK}, 0 offen nt", tag="t0")
        k(f"s_lshl_b32 s33, {S_B}, 15"); k(f"v_mov_b32 {T3}, s33")
        k(f"global_load_dword a151, {T3}, s[44:45]", tag="t0")

    def setup_wq():
        srd(k, 20, "s50", "s51", 4194304)
    def warm1():
        k(f"s_lshl_b32 s33, {S_B}, 2"); k(f"s_add_u32 s33, s33, {S_W}"); k("s_lshl_b32 s33, s33, 15")
        k(f"s_lshl_b32 s32, {S_HKV}, 10"); k("s_add_u32 s33, s33, s32")
        for i in range(4):
            k(f"buffer_load_dwordx4 {ar(128 + 4*i, 4)}, {vr(V_L16)}, {SWQ}, s33 offen", tag="warm")
            if i < 3: k("s_add_u32 s33, s33, 8192")
    def setup_x():
        k(f"s_lshl_b32 s33, {S_B}, 15")
        k("s_add_u32 s44, s44, s33"); k("s_addc_u32 s45, s45, 0")
        srd(k, 8, "s44", "s45", 32768)
        for h in range(2):
            k(f"s_add_u32 m0, s34, {XS + h*4096}")
            k(f"s_add_u32 s32, s34, {h*4096}")
            for i in range(4):
                off = f" offset:{i*1024}" if i else ""
                k(f"buffer_load_dwordx4 {vr(V_RAW + 96 + 4*h + i)}, {SX}, s32 offen{off}{cfg.xpol} lds", tag="x")

    nlead = [0]
    def setup_rest():
        nlead[0] += 1
        k(f"s_or_b32 s33, {S_HKV}, {S_W}")
        k(f"s_or_b32 s{S_NON}, s{S_NON}, 1")
        k(f"s_lshl_b32 s32, {S_B}, 3")
        k(f"v_mov_b32 {T2}, s32"); k(f"v_mov_b32 {T3}, s{S_NON}")
        k("s_cmp_lg_u32 s33, 0")
        k.raw(f"    s_cbranch_scc1 L_nolead{nlead[0]}")
        k.raw("    s_mov_b64 exec, 1")
        k.raw(f"    global_store_dword {T2}, {T3}, s[56:57] sc1")
        k.raw("    s_mov_b64 exec, -1")
        k.raw(f"L_nolead{nlead[0]}:")
        k(f"s_lshl_b32 s33, {S_HKV}, 19")
        k("s_add_u32 s52, s52, s33"); k("s_addc_u32 s53, s53, 0")
        srd(k, 24, "s52", "s53", 524288)
        k("s_lshl_b32 s33, s2, 16")
        k("s_add_u32 s50, s58, s33"); k("s_addc_u32 s51, s59, 0")
        srd(k, 28, "s50", "s51", 65536)
        k(f"s_mov_b32 s{S_DBG}, s56"); k(f"s_mov_b32 s{S_DBG+1}, s57")
        k(f"s_mov_b32 s{S_WS}, s58"); k(f"s_mov_b32 s{S_WS+1}, s59")
        k(f"s_mov_b32 s{S_OUT}, s54"); k(f"s_mov_b32 s{S_OUT+1}, s55")
        if cfg.touch:
            k(f"s_lshl_b32 s33, {S_B}, 19"); k(f"v_mov_b32 {T2}, s33")
            k(f"global_load_dword a144, {T2}, s[58:59]", tag="touch")
            k(f"s_lshl_b32 s33, {S_B}, 7"); k(f"s_add_u32 s33, s33, {FLAG_OFF}"); k(f"v_mov_b32 {T2}, s33")
            k(f"global_load_dword a145, {T2}, s[58:59]", tag="touch")
            k(f"s_lshl_b32 s33, {S_B}, 15"); k(f"v_mov_b32 {T2}, s33")
            k(f"global_load_dword a146, {T2}, s[54:55]", tag="touch")
            k(f"s_lshl_b32 s33, {S_B}, 14"); k(f"v_mov_b32 {T2}, s33")
            k(f"global_load_dword a147, {T2}, s[52:53]", tag="touch")
        if cfg.codewarm:
            n_ = nlead[0]
            k.raw("    s_getpc_b64 s[32:33]")
            k.raw(f"L_pc{n_}:")
            k.raw(f"    s_sub_u32 s32, s32, L_pc{n_}-{KN}")
            k.raw("    s_subb_u32 s33, s33, 0")
            k(f"s_and_b32 s50, {S_B}, 7"); k("s_lshl_b32 s50, s50, 13")
            k(f"v_lshlrev_b32 {T2}, 7, {L}")
            k(f"v_add_u32 {T2}, s50, {T2}")
            k.raw(f"    v_min_u32 {T2}, L_code_end-{KN}-4, {T2}")
            k(f"global_load_dword a148, {T2}, s[32:33]", tag="cw")
        k(f"s_mov_b32 {S_SELE}, 0x05040100")
        k(f"s_mov_b32 {S_SELO}, 0x07060302")
        k(f"s_mov_b32 {S_C}, {CSCALE:#x}")
        k(f"s_lshl_b32 {S_W8K}, {S_W}, 13")

    def addr_calcs():
        k(f"v_lshlrev_b32 {vr(V_XB)}, 10, {T0}")
        k(f"v_lshrrev_b32 {T2}, 2, {T0}")
        k(f"v_lshl_add_u32 {vr(V_XB)}, {T2}, 6, {vr(V_XB)}")
        k(f"v_and_b32 {T2}, 3, {T0}")
        k(f"v_xor_b32 {T2}, {T2}, {T1}")
        k(f"v_lshl_add_u32 {vr(V_XB)}, {T2}, 4, {vr(V_XB)}")
        k(f"v_add_u32 {vr(V_XB)}, {XS}, {vr(V_XB)}")
        k(f"v_and_b32 {T2}, 31, {L}")
        k(f"v_lshrrev_b32 {T3}, 5, {L}")
        k(f"v_lshlrev_b32 {vr(V_KA)}, 3, {T3}")
        k(f"v_xor_b32 {vr(V_KA)}, {vr(V_KA)}, {T0}")
        k(f"v_lshlrev_b32 {vr(V_KA)}, 4, {vr(V_KA)}")
        k(f"v_lshl_add_u32 {vr(V_KA)}, {T2}, 8, {vr(V_KA)}")
        for s in range(1, 8):
            k(f"v_xor_b32 {vr(V_KA+s)}, {s << 4}, {vr(V_KA)}")
        k(f"v_lshrrev_b32 {T2}, 2, {T0}")
        k(f"v_lshl_add_u32 {vr(VA0)}, {T3}, 2, {T2}")
        k(f"v_lshlrev_b32 {vr(VA0)}, 8, {vr(VA0)}")
        k(f"v_lshl_add_u32 {vr(VA0)}, {T2}, 6, {vr(VA0)}")
        k(f"v_and_b32 {T2}, 1, {T1}")
        k(f"v_lshl_add_u32 {vr(VA0)}, {T2}, 5, {vr(VA0)}")
        k(f"v_and_b32 {T2}, 2, {T0}")
        k(f"v_lshl_add_u32 {vr(VA0)}, {T2}, 3, {vr(VA0)}")
        k(f"v_and_b32 {T2}, 1, {T0}")
        k(f"v_lshl_add_u32 {vr(VA0)}, {T2}, 3, {vr(VA0)}")
        for T in range(1, 4):
            k(f"v_xor_b32 {vr(VA0+T)}, {T << 6}, {vr(VA0)}")

    def warm2():
        if cfg.warm2:
            k(f"s_lshl_b32 s33, {S_B}, 2"); k(f"s_add_u32 s33, s33, {S_W}"); k("s_lshl_b32 s33, s33, 12")
            for i in range(4):
                off = f" offset:{i*1024}" if i else ""
                k(f"buffer_load_dwordx4 {ar(144 + 4*i, 4)}, {vr(V_L16)}, {SWO}, s33 offen{off}", tag="warm")

    def xfrags(with_w):
        k.wait_vm("x")
        k("s_barrier")
        stamp(k, cfg, 1)
        for j in range(16):
            k(f"s_add_u32 {S_T0}, {S_ROT}, {j}")
            k(f"s_and_b32 {S_T0}, {S_T0}, 15")
            k(f"s_lshl_b32 {S_T0}, {S_T0}, 6")
            k(f"v_xor_b32 {vr(V_XT)}, {S_T0}, {vr(V_XB)}")
            for qh in range(2):
                off = f" offset:{qh*16384}" if qh else ""
                k(f"ds_read_b128 {ar(A_XB + (2*j+qh)*4, 4)}, {vr(V_XT)}{off}")
            if with_w and j == 3: w1_loads(k, 1, 1)
            if with_w and j == 9: w1_loads(k, 2, 2)
        k(f"v_lshlrev_b32 {T2}, 2, {T1}")
        k(f"v_xor_b32 {T2}, {T0}, {T2}")
        k(f"v_lshlrev_b32 {T2}, 4, {T2}")
        k(f"v_lshl_add_u32 {T2}, {T1}, 10, {T2}")
        k(f"s_lshl_b32 {S_T1}, {S_W}, 8")
        k(f"v_add_u32 {vr(V_WD)}, {S_T1}, {T2}")
        for t in range(1, 4):
            k(f"v_add_u32 {vr(V_WD+t)}, {t*3072}, {vr(V_WD)}")

    def qphase(typeA):
        setup_wq()
        if typeA:
            if cfg.warmA: warm1()
            if cfg.xpos == 0: setup_x()
            if cfg.prof: stamp(k, cfg, 4)
            for i_, (kind, c) in enumerate(ORDER[:min(cfg.nA, 8)]):
                emit_items(k, kv_items(cfg, kind, c, f"{kind}{c}"))
                if cfg.prof and i_ in (1, 3, 5, 7): stamp(k, cfg, {1: 5, 3: 6, 5: 7, 7: 8}[i_])
                if i_ == cfg.xpos - 1: setup_x()
            if cfg.xpos > min(cfg.nA, 8): setup_x()
            setup_rest()
            addr_calcs()
            w1_loads(k, 0, 0)
            xfrags(True)
        else:
            if cfg.bdelay:
                k(f"s_mov_b32 s33, {cfg.bdelay}")
                k.label("L_bd")
                k("s_sleep 8")
                k("s_sub_u32 s33, s33, 1")
                k("s_cmp_lg_u32 s33, 0")
                k("s_cbranch_scc1 L_bd")
            if cfg.warmB: warm1()
            if cfg.bfirst == "x":
                setup_x(); w1_loads(k, 0, 0)
            else:
                k(f"s_mov_b32 s32, s44"); k(f"s_mov_b32 s33, s45")
                k(f"s_mov_b32 s98, s44"); k(f"s_mov_b32 s99, s45") if False else None
                setup_x(); w1_loads(k, 0, 0)
            setup_rest()
            addr_calcs()
            xfrags(True)
        stamp(k, cfg, 2)
        if cfg.skew:
            lb = f"L_skew{int(typeA)}"
            k(f"s_mov_b32 s33, {S_W}")
            k.label(lb)
            k("s_cmp_eq_u32 s33, 0")
            k(f"s_cbranch_scc1 {lb}_d")
            k(f"s_sleep {cfg.skew}")
            k("s_sub_u32 s33, s33, 1")
            k(f"s_branch {lb}")
            k.label(lb + "_d")
        tail = [] if typeA else [it for kind, c in ORDER[:cfg.nB] for it in kv_items(cfg, kind, c, f"{kind}{c}")]
        dist = 3 if typeA else cfg.bdist
        for s in range(16):
            extra = []
            if s + dist < 16 and s + dist >= 3: extra += w1_items(s + dist, (s + dist) % NRAW)
            if s >= 13 and tail:
                n = 4 if s < 15 else 4
                extra += tail[:n]; tail = tail[n:]
            if typeA and s == 1 and cfg.nA > 8:
                def fr():
                    k.wait_lgkm_all(); k("s_barrier")
                extra += [[fr]] + [it for kind, c in ORDER[8:cfg.nA] for it in kv_items(cfg, kind, c, f"{kind}{c}")]
            if s == cfg.warm2_step and cfg.warm2: extra += [[warm2]]
            if cfg.burst:
                proj_step(k, s % NRAW, V_QD, lambda qh: ar(A_XB + (2*s+qh)*4, 4), s == 0, V_F, [])
                emit_items(k, extra)
            else:
                proj_step(k, s % NRAW, V_QD, lambda qh: ar(A_XB + (2*s+qh)*4, 4), s == 0, V_F, extra)
        for i in range(64):
            k(f"v_mul_f32 {vr(V_QD+i)}, {S_C}, {vr(V_QD+i)}")
            if i % 16 == 15 and tail:
                emit_items(k, tail[:1]); tail = tail[1:]
        emit_items(k, tail)
        for r in range(4):
            X = V_RAW + 8*r; Y = X + 4
            for t in range(4):
                k(f"v_cvt_pk_bf16_f32 {vr(X+t)}, {vr(V_QD + ((2*t)*2+0)*4 + r)}, {vr(V_QD + ((2*t+1)*2+0)*4 + r)}")
                k(f"v_cvt_pk_bf16_f32 {vr(Y+t)}, {vr(V_QD + ((2*t)*2+1)*4 + r)}, {vr(V_QD + ((2*t+1)*2+1)*4 + r)}")
        for r in range(4):
            X = V_RAW + 8*r; Y = X + 4
            for t in range(4):
                k(f"v_permlane16_swap_b32 {vr(X+t)}, {vr(Y+t)}")
        for r in range(4):
            X = V_RAW + 8*r; Y = X + 4
            for t in range(4):
                k(f"v_accvgpr_write_b32 {ar(A_Q + 4*r + t)}, {vr(X+t)}")
                k(f"v_accvgpr_write_b32 {ar(A_Q + 4*(4+r) + t)}, {vr(Y+t)}")
        k.wait_lgkm_all()
        if typeA: k.wait_vm_all()

    k.save_state("q")
    k(f"s_cmp_eq_u32 {S_TYPE}, 1")
    k("s_cbranch_scc1 L_q1")
    qphase(True)
    k("s_branch L_qdone")
    k.label("L_q1")
    if cfg.hack2 == "Bexit": k("s_endpgm")
    k.restore_state("q")
    qphase(False)
    k.label("L_qdone")
    k("s_nop 15")
    if cfg.hack2:
        stamp(k, cfg, 3)
        stamps_out(k, cfg)
        k.label("L_end")
        k("s_endpgm")
        return k
    attention(k, cfg)
    oproj(k, cfg)
    stamp(k, cfg, 14)
    if cfg.wflags: tail_pre(k, cfg)
    assert cfg.pbf16
    if cfg.chk:
        k(f"s_lshl_b32 {S_T0}, {S_B}, 3")
        k(f"v_readfirstlane_b32 s51, v{V_NON}")
        k("s_nop 3")
        k.raw("    s_mov_b32 s50, 0x10000")
        k.raw("L_cn:")
        k.raw("    s_cmp_lg_u32 s51, 0")
        k.raw("    s_cbranch_scc1 L_cg")
        k.raw(f"    v_mov_b32 v2, {NONCE_OFF_EXPR(cfg)}")
        k.raw(f"    global_load_dword v3, v2, s[{S_DBG}:{S_DBG+1}] sc1")
        k.raw("    s_waitcnt vmcnt(0)")
        k.raw("    v_readfirstlane_b32 s51, v3")
        k.raw("    s_sub_u32 s50, s50, 1")
        k.raw("    s_cmp_lg_u32 s50, 0")
        k.raw("    s_cbranch_scc1 L_cn")
        k.raw("L_cg:")
    k(f"s_lshl_b32 {S_T0}, {S_W}, 13")
    k(f"v_add_u32 {vr(V_PO)}, {S_T0}, {vr(V_L16)}")
    for T in range(4):
        tb = 64 + 8*T
        for i in range(8):
            k(f"v_cvt_pk_bf16_f32 {vr(tb+i)}, {vr(V_OD + 16*T + 2*i)}, {vr(V_OD + 16*T + 2*i+1)}")
        k(f"s_mov_b32 {S_T1}, {T*2048}")
        k(f"buffer_store_dwordx4 {vr(tb,4)}, {vr(V_PO)}, {SP}, {S_T1} offen{cfg.stpol}")
        k(f"buffer_store_dwordx4 {vr(tb+4,4)}, {vr(V_PO)}, {SP}, {S_T1} offen offset:1024{cfg.stpol}")
        if cfg.chk:
            for rho in range(2):
                b = tb + 4*rho; ch = 96 + 2*T + rho
                k(f"v_bitop3_b32 {vr(ch)}, {vr(b)}, {vr(b+1)}, {vr(b+2)} bitop3:0x96")
                k(f"v_bitop3_b32 {vr(ch)}, {vr(ch)}, {vr(b+3)}, s51 bitop3:0x96")
    if cfg.chk:
        k(f"s_lshl_b32 {S_T0}, {S_W}, 11")
        k(f"v_add_u32 v3, {S_T0}, {vr(V_L16)}")
        k(f"s_mov_b32 {S_T1}, 32768")
        k(f"buffer_store_dwordx4 v[96:99], v3, {SP}, {S_T1} offen{cfg.stpol}")
        k(f"buffer_store_dwordx4 v[100:103], v3, {SP}, {S_T1} offen offset:1024{cfg.stpol}")
        k("s_barrier")
        stamp(k, cfg, 15)
        reduce_tail_c(k, cfg)
    elif cfg.wflags:
        reduce_tail_w(k, cfg)
    else:
        k.wait_vm_all()
        k("s_barrier")
        stamp(k, cfg, 15)
        reduce_tail(k, cfg)
    if cfg.dbgtime:
        k.wait_vm_all()
        k("s_memrealtime s[64:65]"); k("s_memtime s[66:67]")
        k("s_waitcnt lgkmcnt(0)")
        k("s_sub_u32 s64, s64, s60"); k("s_sub_u32 s66, s66, s62")
        k(f"s_and_b32 s33, {S_B}, 1")
        k("s_cmp_eq_u32 s33, 0")
        k("s_cselect_b32 s64, s64, s66")
        k(f"s_or_b32 s33, {S_HKV}, {S_W}")
        k("s_cmp_lg_u32 s33, 0")
        k("s_cbranch_scc1 L_end")
        k(f"s_lshl_b32 s33, {S_B}, 3"); k("s_add_u32 s33, s33, 4")
        k("v_mov_b32 v2, s33"); k("v_mov_b32 v3, s64")
        k("s_mov_b64 exec, 1")
        k(f"global_store_dword v2, v3, s[{S_DBG}:{S_DBG+1}]")
    stamps_out(k, cfg)
    k.label("L_end")
    k("s_endpgm")
    return k

def stamps_out(k, cfg):
    L = vr(V_LANE)
    if cfg.stamps:
        k.wait_vm_all()
        stamp(k, cfg, 13)
        NST = 16
        k(f"s_cmp_lg_u32 {S_W}, 0")
        k(f"s_cbranch_scc1 L_end")
        k(f"s_mul_i32 s58, s2, {NST*8}")
        k(f"s_add_u32 s58, s58, {STAMP_OFF}")
        k(f"s_add_u32 s56, s{S_WS}, s58"); k(f"s_addc_u32 s57, s{S_WS+1}, 0")
        order = list(range(16)) if cfg.prof2 else [0,1,2,3,4,5,6,7,8,10,9,14,15,12,13,11]
        if cfg.prof2: k("s_waitcnt lgkmcnt(0)")
        for i in range(NST):
            j = order[i]
            k(f"v_mov_b32 v{32+2*i}, s{60+2*j}"); k(f"v_mov_b32 v{33+2*i}, s{61+2*j}")
        k("v_mov_b32 v3, 0")
        k(f"v_cmp_eq_u32 vcc, 0, {L}")
        k("s_and_saveexec_b64 s[58:59], vcc")
        for i in range(NST // 2):
            k(f"global_store_dwordx4 v3, v[{32+4*i}:{35+4*i}], s[56:57] offset:{16*i}")

def tail_pre(k, cfg):
    L = vr(V_LANE)
    k(f"s_lshl_b32 {S_T0}, {S_B}, 3")
    k(f"v_mov_b32 v6, {S_T0}")
    k(f"s_lshl_b32 {S_T1}, {S_B}, 7"); k(f"s_add_u32 {S_T1}, {S_T1}, {FLAG_OFF}")
    k(f"s_lshr_b32 {S_T2}, {S_HKV}, 1")
    k(f"s_lshl_b32 {S_T2}, {S_T2}, 2"); k(f"s_add_u32 {S_T2}, {S_T2}, {S_T1}")
    k(f"v_lshl_add_u32 v20, {L}, 4, {S_T2}")
    k(f"s_lshl_b32 {S_T2}, {S_HKV}, 2"); k(f"s_add_u32 {S_T2}, {S_T2}, {S_W}")
    k(f"s_lshl_b32 {S_T3}, {S_T2}, 2"); k(f"s_add_u32 {S_T3}, {S_T3}, {S_T1}")
    k(f"v_mov_b32 v2, {S_T3}")
    k(f"s_lshl_b32 {S_T3}, {S_T2}, 10")
    k(f"v_add_u32 v4, {S_T3}, {vr(V_L16)}")
    k(f"v_and_b32 v5, 31, {L}"); k("v_lshlrev_b32 v5, 10, v5")
    k(f"v_lshrrev_b32 v3, 5, {L}"); k("v_lshl_add_u32 v5, v3, 4, v5")
    k(f"s_lshl_b32 {S_T3}, {S_T2}, 5")
    k(f"v_add_u32 v5, {S_T3}, v5")
    k(f"s_lshl_b32 s33, {S_B}, 19")
    k(f"s_add_u32 s50, s{S_WS}, s33"); k(f"s_addc_u32 s51, s{S_WS+1}, 0")
    srd(k, 8, "s50", "s51", 524288)
    k(f"s_lshl_b32 s33, {S_B}, 15")
    k(f"s_add_u32 s50, s{S_OUT}, s33"); k(f"s_addc_u32 s51, s{S_OUT+1}, 0")
    srd(k, 12, "s50", "s51", 32768)
    k(f"v_readfirstlane_b32 s51, v{V_NON}")

def reduce_tail_w(k, cfg):
    k.wait_vm_all()
    stamp(k, cfg, 15)
    k.raw("    s_mov_b64 exec, 1")
    k.raw("    s_mov_b32 s50, 0x10000")
    k.raw("L_npoll:")
    k.raw("    s_cmp_lg_u32 s51, 0")
    k.raw("    s_cbranch_scc1 L_ngot")
    k.raw(f"    global_load_dword v8, v6, s[{S_DBG}:{S_DBG+1}] sc1")
    k.raw("    s_waitcnt vmcnt(0)")
    k.raw("    v_readfirstlane_b32 s51, v8")
    k.raw("    s_sub_u32 s50, s50, 1")
    k.raw("    s_cmp_lg_u32 s50, 0")
    k.raw("    s_cbranch_scc1 L_npoll")
    k.raw("L_ngot:")
    k.raw("    v_mov_b32 v3, s51")
    k.raw(f"    global_store_dword v2, v3, s[{S_WS}:{S_WS+1}] sc1")
    k.raw("    s_mov_b64 exec, 0xff")
    k.raw("    s_mov_b32 s50, 0x10000")
    k.raw("L_poll:")
    k.raw(f"    global_load_dword v8, v20, s[{S_WS}:{S_WS+1}] sc1")
    k.raw("    s_waitcnt vmcnt(0)")
    k.raw("    v_cmp_ne_u32 vcc, s51, v8")
    k.raw("    s_nop 4")
    k.raw("    s_cmp_eq_u64 vcc, 0")
    k.raw("    s_cbranch_scc1 L_go")
    k.raw(f"    s_sleep {cfg.sleep}")
    k.raw("    s_sub_u32 s50, s50, 1")
    k.raw("    s_cmp_lg_u32 s50, 0")
    k.raw("    s_cbranch_scc1 L_poll")
    k.raw("L_go:")
    k.raw("    s_mov_b64 exec, -1")
    stamp(k, cfg, 12)
    final_sum(k, cfg)

def final_sum(k, cfg):
    for p in range(8):
        k(f"s_mov_b32 s52, {p*65536}")
        k(f"buffer_load_dwordx4 v[{32+4*p}:{35+4*p}], v4, s[8:11], s52 offen{cfg.ldpol}")
    k("s_mov_b32 s53, 0xffff0000")
    for p in range(8):
        for t in range(4):
            src = f"v{32+4*p+t}"
            if p == 0:
                k(f"v_lshlrev_b32 v{8+2*t}, 16, {src}")
                k(f"v_and_b32 v{9+2*t}, s53, {src}")
            else:
                k(f"v_lshlrev_b32 v{16+2*t}, 16, {src}")
                k(f"v_and_b32 v{17+2*t}, s53, {src}")
                k(f"v_add_f32 v{8+2*t}, v{8+2*t}, v{16+2*t}")
                k(f"v_add_f32 v{9+2*t}, v{9+2*t}, v{17+2*t}")
    k("v_cvt_pk_bf16_f32 v80, v8, v9"); k("v_cvt_pk_bf16_f32 v81, v10, v11")
    k("v_cvt_pk_bf16_f32 v82, v12, v13"); k("v_cvt_pk_bf16_f32 v83, v14, v15")
    k("v_permlane32_swap_b32 v80, v82")
    k("v_permlane32_swap_b32 v81, v83")
    k(f"buffer_store_dwordx4 v[80:83], v5, s[12:15], 0 offen{cfg.outpol}")

def NONCE_OFF_EXPR(cfg):
    return "s44"

def reduce_tail_c(k, cfg):
    L = vr(V_LANE)
    k(f"s_lshl_b32 {S_T1}, {S_B}, 7"); k(f"s_add_u32 {S_T1}, {S_T1}, {FLAG_OFF}")
    k(f"v_lshl_add_u32 v20, {L}, 2, {S_T1}")
    k(f"s_lshl_b32 {S_T2}, {S_HKV}, 2"); k(f"s_add_u32 {S_T2}, {S_T2}, {S_T1}")
    k(f"v_mov_b32 v2, {S_T2}")
    k(f"v_mov_b32 v3, s51")
    k(f"s_cmp_lg_u32 {S_W}, 0")
    k.raw("    s_cbranch_scc1 L_nosig")
    k.raw("    s_mov_b64 exec, 1")
    k.raw(f"    global_store_dword v2, v3, s[{S_WS}:{S_WS+1}] sc1")
    k.raw("    s_mov_b64 exec, 0xff")
    k.raw("    s_mov_b32 s50, 0x10000")
    k.raw("L_poll:")
    k.raw(f"    global_load_dword v8, v20, s[{S_WS}:{S_WS+1}] sc1")
    k.raw("    s_waitcnt vmcnt(0)")
    k.raw("    v_cmp_ne_u32 vcc, s51, v8")
    k.raw("    s_nop 4")
    k.raw("    s_cmp_eq_u64 vcc, 0")
    k.raw("    s_cbranch_scc1 L_go")
    k.raw(f"    s_sleep {cfg.sleep}")
    k.raw("    s_sub_u32 s50, s50, 1")
    k.raw("    s_cmp_lg_u32 s50, 0")
    k.raw("    s_cbranch_scc1 L_poll")
    k.raw("L_go:")
    k.raw("    s_mov_b64 exec, -1")
    k.raw("L_nosig:")
    k(f"s_lshl_b32 {S_T1}, {S_HKV}, 2"); k(f"s_add_u32 {S_T1}, {S_T1}, {S_W}")
    k(f"s_lshl_b32 {S_T2}, {S_T1}, 10")
    k(f"v_add_u32 v4, {S_T2}, {vr(V_L16)}")
    k(f"s_lshr_b32 {S_T2}, {S_T1}, 2"); k(f"s_lshl_b32 {S_T2}, {S_T2}, 10")
    k(f"s_and_b32 {S_T3}, {S_T1}, 3"); k(f"s_lshl_b32 {S_T3}, {S_T3}, 2")
    k(f"s_add_u32 {S_T2}, {S_T2}, {S_T3}"); k(f"s_add_u32 {S_T2}, {S_T2}, 32768")
    k(f"v_add_u32 v7, {S_T2}, {vr(V_L16)}")
    k(f"s_lshl_b32 s33, {S_B}, 19")
    k(f"s_add_u32 s32, s{S_WS}, s33"); k(f"s_addc_u32 s33, s{S_WS+1}, 0")
    srd(k, 8, "s32", "s33", 524288)
    k(f"s_lshl_b32 s33, {S_B}, 15")
    k(f"s_add_u32 s32, s{S_OUT}, s33"); k(f"s_addc_u32 s33, s{S_OUT+1}, 0")
    srd(k, 12, "s32", "s33", 32768)
    k(f"v_and_b32 v5, 31, {L}"); k("v_lshlrev_b32 v5, 10, v5")
    k(f"v_lshrrev_b32 v6, 5, {L}"); k("v_lshl_add_u32 v5, v6, 4, v5")
    k(f"s_lshl_b32 {S_T2}, {S_T1}, 5")
    k(f"v_add_u32 v5, {S_T2}, v5")
    k.wait_vm_all()
    k("s_barrier")
    stamp(k, cfg, 12)
    k.raw("    s_mov_b32 s50, 0x4000")
    k.raw("L_rld:")
    for p in range(8):
        k.raw(f"    s_mov_b32 s52, {p*65536}")
        k.raw(f"    buffer_load_dwordx4 v[{32+4*p}:{35+4*p}], v4, s[8:11], s52 offen{cfg.ldpol}")
        k.raw(f"    buffer_load_dword v{64+p}, v7, s[8:11], s52 offen{cfg.ldpol}")
    k.raw("    v_mov_b32 v9, 0")
    for p in range(8):
        k.raw(f"    s_waitcnt vmcnt({2*(7-p)})")
        k.raw(f"    v_bitop3_b32 v8, v{32+4*p}, v{33+4*p}, v{34+4*p} bitop3:0x96")
        k.raw(f"    v_bitop3_b32 v8, v8, v{35+4*p}, v{64+p} bitop3:0x96")
        k.raw(f"    v_xor_b32 v8, s51, v8")
        k.raw(f"    v_or_b32 v9, v9, v8")
    k.raw("    v_cmp_ne_u32 vcc, 0, v9")
    k.raw("    s_nop 4")
    k.raw("    s_cmp_eq_u64 vcc, 0")
    k.raw("    s_cbranch_scc1 L_rok")
    k.raw("    s_sub_u32 s50, s50, 1")
    k.raw("    s_cmp_lg_u32 s50, 0")
    k.raw("    s_cbranch_scc1 L_rld")
    k.raw("L_rok:")
    k("s_mov_b32 s53, 0xffff0000")
    for p in range(8):
        for t in range(4):
            src = f"v{32+4*p+t}"
            if p == 0:
                k(f"v_lshlrev_b32 v{8+2*t}, 16, {src}")
                k(f"v_and_b32 v{9+2*t}, s53, {src}")
            else:
                k(f"v_lshlrev_b32 v{16+2*t}, 16, {src}")
                k(f"v_and_b32 v{17+2*t}, s53, {src}")
                k(f"v_add_f32 v{8+2*t}, v{8+2*t}, v{16+2*t}")
                k(f"v_add_f32 v{9+2*t}, v{9+2*t}, v{17+2*t}")
    k("v_cvt_pk_bf16_f32 v80, v8, v9"); k("v_cvt_pk_bf16_f32 v81, v10, v11")
    k("v_cvt_pk_bf16_f32 v82, v12, v13"); k("v_cvt_pk_bf16_f32 v83, v14, v15")
    k("v_permlane32_swap_b32 v80, v82")
    k("v_permlane32_swap_b32 v81, v83")
    k(f"buffer_store_dwordx4 v[80:83], v5, s[12:15], 0 offen{cfg.outpol}")

def reduce_tail(k, cfg):
    L = vr(V_LANE)
    k(f"s_lshl_b32 {S_T0}, {S_B}, 3")
    k(f"v_mov_b32 v6, {S_T0}")
    k(f"s_lshl_b32 {S_T1}, {S_B}, 7"); k(f"s_add_u32 {S_T1}, {S_T1}, {FLAG_OFF}")
    k(f"v_lshl_add_u32 v20, {L}, 2, {S_T1}")
    k(f"s_lshl_b32 {S_T2}, {S_HKV}, 2"); k(f"s_add_u32 {S_T2}, {S_T2}, {S_T1}")
    k(f"v_mov_b32 v2, {S_T2}")
    k(f"v_readfirstlane_b32 s51, v{V_NON}")
    k(f"s_cmp_lg_u32 {S_W}, 0")
    k.raw("    s_cbranch_scc1 L_nosig")
    k.raw("    s_mov_b64 exec, 1")
    k.raw("    s_mov_b32 s50, 0x10000")
    k.raw("L_npoll:")
    k.raw("    s_cmp_lg_u32 s51, 0")
    k.raw("    s_cbranch_scc1 L_ngot")
    k.raw(f"    global_load_dword v8, v6, s[{S_DBG}:{S_DBG+1}] sc1")
    k.raw("    s_waitcnt vmcnt(0)")
    k.raw("    v_readfirstlane_b32 s51, v8")
    k.raw("    s_sub_u32 s50, s50, 1")
    k.raw("    s_cmp_lg_u32 s50, 0")
    k.raw("    s_cbranch_scc1 L_npoll")
    k.raw("L_ngot:")
    k.raw("    v_mov_b32 v3, s51")
    k.raw(f"    global_store_dword v2, v3, s[{S_WS}:{S_WS+1}] sc1")
    k.raw("    s_mov_b64 exec, 0xff")
    k.raw("    s_mov_b32 s50, 0x10000")
    k.raw("L_poll:")
    k.raw(f"    global_load_dword v8, v20, s[{S_WS}:{S_WS+1}] sc1")
    k.raw("    s_waitcnt vmcnt(0)")
    k.raw("    v_cmp_ne_u32 vcc, s51, v8")
    k.raw("    s_nop 4")
    k.raw("    s_cmp_eq_u64 vcc, 0")
    k.raw("    s_cbranch_scc1 L_go")
    k.raw(f"    s_sleep {cfg.sleep}")
    k.raw("    s_sub_u32 s50, s50, 1")
    k.raw("    s_cmp_lg_u32 s50, 0")
    k.raw("    s_cbranch_scc1 L_poll")
    k.raw("L_go:")
    k.raw("    s_mov_b64 exec, -1")
    k.raw("L_nosig:")
    k(f"s_lshl_b32 {S_T1}, {S_HKV}, 2"); k(f"s_add_u32 {S_T1}, {S_T1}, {S_W}")
    k(f"s_lshl_b32 {S_T2}, {S_T1}, 10")
    k(f"v_add_u32 v4, {S_T2}, {vr(V_L16)}")
    k(f"s_lshl_b32 s33, {S_B}, 19")
    k(f"s_add_u32 s50, s{S_WS}, s33"); k(f"s_addc_u32 s51, s{S_WS+1}, 0")
    srd(k, 8, "s50", "s51", 524288)
    k(f"s_lshl_b32 s33, {S_B}, 15")
    k(f"s_add_u32 s50, s{S_OUT}, s33"); k(f"s_addc_u32 s51, s{S_OUT+1}, 0")
    srd(k, 12, "s50", "s51", 32768)
    k(f"v_and_b32 v5, 31, {L}"); k("v_lshlrev_b32 v5, 10, v5")
    k(f"v_lshrrev_b32 v6, 5, {L}"); k("v_lshl_add_u32 v5, v6, 4, v5")
    k(f"s_lshl_b32 {S_T2}, {S_T1}, 5")
    k(f"v_add_u32 v5, {S_T2}, v5")
    k("s_barrier")
    stamp(k, cfg, 12)
    for p in range(8):
        k(f"s_mov_b32 s52, {p*65536}")
        k(f"buffer_load_dwordx4 v[{32+4*p}:{35+4*p}], v4, s[8:11], s52 offen{cfg.ldpol}")
    k("s_mov_b32 s53, 0xffff0000")
    for p in range(8):
        for t in range(4):
            src = f"v{32+4*p+t}"
            if p == 0:
                k(f"v_lshlrev_b32 v{8+2*t}, 16, {src}")
                k(f"v_and_b32 v{9+2*t}, s53, {src}")
            else:
                k(f"v_lshlrev_b32 v{16+2*t}, 16, {src}")
                k(f"v_and_b32 v{17+2*t}, s53, {src}")
                k(f"v_add_f32 v{8+2*t}, v{8+2*t}, v{16+2*t}")
                k(f"v_add_f32 v{9+2*t}, v{9+2*t}, v{17+2*t}")
    k("v_cvt_pk_bf16_f32 v80, v8, v9"); k("v_cvt_pk_bf16_f32 v81, v10, v11")
    k("v_cvt_pk_bf16_f32 v82, v12, v13"); k("v_cvt_pk_bf16_f32 v83, v14, v15")
    k("v_permlane32_swap_b32 v80, v82")
    k("v_permlane32_swap_b32 v81, v83")
    k(f"buffer_store_dwordx4 v[80:83], v5, s[12:15], 0 offen{cfg.outpol}")

def attention(k, cfg):
    Lr, AL, BM, T0, T1, T2 = vr(V_L), vr(V_AL), vr(V_BM), vr(V_T0), vr(V_T1), vr(V_T2)
    NM = lambda i: vr(V_NM + i)
    D = cfg.D; NFB = D + 1
    Sb = lambda c, t: V_S + (c & 1) * 32 + 16 * t
    Pb = lambda c, t: V_P + (c & 1) * 16 + 8 * t
    for T in range(4):
        k(f"v_add_u32 {vr(V_VA[1]+T)}, 65536, {vr(VA0+T)}")
        k(f"v_add_u32 {vr(V_VA[2]+T)}, 131072, {vr(VA0+T)}")
    units = []
    kadj = {}
    kb_cur = [0]
    def qk_units(c):
        slot = KSLOT[c]; kb = slot // 4
        if kb != kb_cur[0]:
            kadj[len(units)] = (kb - kb_cur[0]) * 65536; kb_cur[0] = kb
        for t in range(2):
            base = (slot - 4*kb) * SLOT + t * 8192
            for half in range(2):
                u = dict(reads=[], mf=[])
                for x in range(4):
                    sig = 4*half + x
                    u["reads"].append((lambda fb, x=x, sig=sig, base=base: f"ds_read_b128 {ar(fb+4*x,4)}, {vr(V_KA+sig)} offset:{base}"))
                    d = vr(Sb(c, t), 16)
                    cc = d if sig else ("0" if (c == 0 or (c == 1 and t == 0)) else vr(V_NM, 16))
                    u["mf"].append((lambda fb, x=x, sig=sig, d=d, cc=cc: f"v_mfma_f32_32x32x16_bf16 {d}, {ar(fb+4*x,4)}, {ar(A_Q+4*sig,4)}, {cc}"))
                units.append(u)
    def pv_units(c):
        slot = VSLOT[c]; vb = slot // 4
        for T in range(4):
            u = dict(reads=[], mf=[])
            for x in range(4):
                t = x >> 1; uu = x & 1
                off = (slot - 4*vb) * SLOT + (t * 32 + 16*uu) * 256
                va = V_VA[vb] + T
                u["reads"].append((lambda fb, x=x, va=va, off=off: f"ds_read_b64_tr_b16 {ar(fb+4*x,2)}, {vr(va)} offset:{off}"))
                u["reads"].append((lambda fb, x=x, va=va, off=off: f"ds_read_b64_tr_b16 {ar(fb+4*x+2,2)}, {vr(va)} offset:{off+2048}"))
                d = vr(V_O + 16*T, 16)
                cc = "0" if (c == 0 and x == 0) else d
                pf = vr(Pb(c, t) + 4*uu, 4)
                u["mf"].append((lambda fb, x=x, d=d, cc=cc, pf=pf: f"v_mfma_f32_32x32x16_bf16 {d}, {ar(fb+4*x,4)}, {pf}, {cc}"))
            units.append(u)
    qk0 = {}; pv0 = {}
    def addq(c): qk0[c] = len(units); qk_units(c)
    def addp(c): pv0[c] = len(units); pv_units(c)
    addq(0); addq(1)
    for s_ in range(1, 7): addp(s_ - 1); addq(s_ + 1)
    addp(6); addp(7)
    NU = len(units)
    vq = []
    def V(text, mu, idn=None, cost=None):
        if cost is None:
            cost = 8 if (isinstance(text, str) and (text.startswith("v_exp") or text.startswith("v_rcp"))) else 4
        vq.append((text, mu, idn, cost))
    def maxs(c, t):
        s = Sb(c, t); mu = qk0[c] + 2*t + 2
        if c == 1 and t == 0 and cfg.guard != "sum":
            for i in range(16): V(f"v_add_f32 {vr(s+i)}, {NM(0)}, {vr(s+i)}", mu)
        if t == 0:
            V(f"v_max_f32 {BM}, {vr(s)}, {vr(s+1)}", mu); rng = range(1, 8)
        else: rng = range(8)
        for i in rng: V(f"v_max3_f32 {BM}, {BM}, {vr(s+2*i)}, {vr(s+2*i+1)}", mu)
    def glue(c):
        mu = qk0[c] + 4
        V(f"v_mov_b32 {T0}, {BM}", mu)
        V(f"v_permlane32_swap_b32 {BM}, {T0}", mu)
        V(f"v_max_f32 {BM}, {BM}, {T0}", mu)
        if c == 0:
            for i in range(16): V(f"v_sub_f32 {NM(i)}, 0, {BM}", mu, idn=("negm" if i == 15 else None))
            V(f"v_mov_b32 {Lr}, 0", mu)
        else:
            def rare(c=c):
                lb = f"L_rg{c}"
                k(f"v_cmp_lt_f32 vcc, {cfg.thr:#x}, {BM}")
                k(f"s_mov_b32 {S_RF}, 0")
                k("s_nop 3")
                k("s_cmp_lg_u64 vcc, 0")
                k(f"s_cbranch_scc1 {lb}")
                k.cond_begin(lb)
                k(f"v_max_f32 {T0}, 0, {BM}")
                for t in range(2):
                    s = Sb(c, t)
                    for i in range(16): k(f"v_sub_f32 {vr(s+i)}, {vr(s+i)}, {T0}")
                for i in range(16): k(f"v_sub_f32 {NM(i)}, {NM(i)}, {T0}")
                k(f"v_sub_f32 {T0}, 0, {T0}")
                k(f"v_exp_f32 {AL}, {T0}")
                k(f"s_mov_b32 {S_RF}, 1")
                k(f"v_mul_f32 {Lr}, {Lr}, {AL}")
                k.cond_end()
            V(rare, mu, idn=f"glue{c}", cost=24)
    def exps(c, t):
        s = Sb(c, t); p = Pb(c, t)
        for i in range(8):
            a_, b_ = vr(s+2*i), vr(s+2*i+1)
            if c == 0:
                V(f"v_add_f32 {a_}, {NM(0)}, {a_}", 0)
                V(f"v_add_f32 {b_}, {NM(0)}, {b_}", 0)
            V(f"v_exp_f32 {a_}, {a_}", 0)
            V(f"v_exp_f32 {b_}, {b_}", 0)
            V(f"v_add_f32 {Lr}, {Lr}, {a_}", 0)
            V(f"v_add_f32 {Lr}, {Lr}, {b_}", 0)
            V(f"v_cvt_pk_bf16_f32 {vr(p+i)}, {a_}, {b_}", 0, idn=(f"exp{c}_{t}" if i == 7 else None))
    def rescale(c, mu):
        def f(c=c):
            lb = f"L_rs{c}"
            k(f"s_cmp_lg_u32 {S_RF}, 0")
            k(f"s_cbranch_scc1 {lb}")
            k.cond_begin(lb)
            for i in range(64): k(f"v_mul_f32 {vr(V_O+i)}, {AL}, {vr(V_O+i)}")
            k.cond_end()
        V(f, mu, idn=f"resc{c}", cost=8)
    def norm(T, mu):
        o = V_O + 16*T
        for u in range(2):
            for i in range(8): V(f"v_mul_f32 {vr(o+8*u+i)}, {AL}, {vr(o+8*u+i)}", mu)
            for t in range(4): V(f"v_cvt_pk_bf16_f32 {vr(o+8*u+t)}, {vr(o+8*u+2*t)}, {vr(o+8*u+2*t+1)}", mu)
            V(f"ds_write_b128 {T1}, {vr(o+8*u,4)} offset:{(2*T+u)*1024}", mu)
    SG = vr(V_SG)
    def exps_sum(c, t):
        s = Sb(c, t); p = Pb(c, t)
        for i in range(8):
            t0, t1 = vr(V_TE + 2*(i & 1)), vr(V_TE + 2*(i & 1) + 1)
            a_, b_ = vr(s+2*i), vr(s+2*i+1)
            if c == 0:
                V(f"v_add_f32 {t0}, {NM(0)}, {a_}", 0)
                V(f"v_add_f32 {t1}, {NM(0)}, {b_}", 0)
                a_, b_ = t0, t1
            V(f"v_exp_f32 {t0}, {a_}", 0)
            V(f"v_exp_f32 {t1}, {b_}", 0)
            if t == 0 and i == 0:
                V(f"v_add_f32 {SG}, {t0}, {t1}", 0)
            else:
                V(f"v_add_f32 {SG}, {SG}, {t0}", 0)
                V(f"v_add_f32 {SG}, {SG}, {t1}", 0)
            V(f"v_cvt_pk_bf16_f32 {vr(p+i)}, {t0}, {t1}", 0, idn=(f"exp{c}_{t}" if i == 7 else None))
    def adds10():
        s = Sb(1, 0)
        for i in range(16): V(f"v_add_f32 {vr(s+i)}, {NM(0)}, {vr(s+i)}", qk0[1] + 2)
    def check(c, mu):
        def f(c=c):
            lb = f"L_rg{c}"
            k(f"v_cmp_lt_f32 vcc, {cfg.sumthr:#x}, {SG}")
            k("s_nop 3")
            k("s_cmp_lg_u64 vcc, 0")
            k(f"s_cbranch_scc1 {lb}")
            k.cond_begin(lb)
            s0, s1 = Sb(c, 0), Sb(c, 1)
            k(f"v_max_f32 {BM}, {vr(s0)}, {vr(s0+1)}")
            for i in range(1, 8): k(f"v_max3_f32 {BM}, {BM}, {vr(s0+2*i)}, {vr(s0+2*i+1)}")
            for i in range(8): k(f"v_max3_f32 {BM}, {BM}, {vr(s1+2*i)}, {vr(s1+2*i+1)}")
            k(f"v_mov_b32 {T0}, {BM}")
            k(f"v_permlane32_swap_b32 {BM}, {T0}")
            k(f"v_max3_f32 {T0}, {BM}, {T0}, 0")
            for i in range(32): k(f"v_sub_f32 {vr(s0+i)}, {vr(s0+i)}, {T0}")
            if c < 7:
                n0 = Sb(c + 1, 0)
                for i in range(32): k(f"v_sub_f32 {vr(n0+i)}, {vr(n0+i)}, {T0}")
            for i in range(16): k(f"v_sub_f32 {NM(i)}, {NM(i)}, {T0}")
            k(f"v_sub_f32 {T0}, 0, {T0}")
            k(f"v_exp_f32 {AL}, {T0}")
            k("s_nop 0")
            k(f"v_mul_f32 {Lr}, {Lr}, {AL}")
            for i in range(64): k(f"v_mul_f32 {vr(V_O+i)}, {AL}, {vr(V_O+i)}")
            for t in range(2):
                s = Sb(c, t); p = Pb(c, t)
                for i in range(8):
                    t0, t1 = vr(V_TE), vr(V_TE + 1)
                    k(f"v_exp_f32 {t0}, {vr(s+2*i)}")
                    k(f"v_exp_f32 {t1}, {vr(s+2*i+1)}")
                    if t == 0 and i == 0:
                        k("s_nop 0")
                        k(f"v_add_f32 {SG}, {t0}, {t1}")
                    else:
                        k(f"v_add_f32 {SG}, {SG}, {t0}")
                        k(f"v_add_f32 {SG}, {SG}, {t1}")
                    k(f"v_cvt_pk_bf16_f32 {vr(p+i)}, {t0}, {t1}")
            k.cond_end()
            k(f"v_add_f32 {Lr}, {Lr}, {SG}")
        V(f, mu, idn=f"chk{c}", cost=24)
    phases = []
    def phase(u0, u1, fn):
        i0 = len(vq); fn(); phases.append((u0, u1, i0, len(vq)))
    phase(0, 4, lambda: maxs(0, 0))
    for p in range(8):
        u0 = 4 if p == 0 else 8*p
        u1 = 8 if p == 0 else (8*p + 8 if p < 7 else 60)
        def f(p=p):
            if cfg.guard == "sum":
                if p == 0:
                    maxs(0, 1); glue(0); exps_sum(0, 0); exps_sum(0, 1)
                    V(f"v_mov_b32 {Lr}, {SG}", 0)
                    adds10()
                else:
                    exps_sum(p, 0); exps_sum(p, 1)
                    check(p, pv0[p])
            else:
                maxs(p, 1); glue(p); exps(p, 0); exps(p, 1)
                if p < 7: maxs(p + 1, 0)
                if p >= 1: rescale(p, pv0[p-1] + 4)
            if p == 7:
                V(f"v_mov_b32 {T0}, {Lr}", 0)
                V(f"v_permlane32_swap_b32 {Lr}, {T0}", 0)
                V(f"v_add_f32 {Lr}, {Lr}, {T0}", 0)
                V(f"v_add_u32 {T1}, {S_W8K}, {vr(V_L16)}", 0)
                V(f"v_add_u32 {T1}, {OEX}, {T1}", 0)
        phase(u0, u1, f)
    def fin():
        V(f"v_rcp_f32 {AL}, {Lr}", 60)
        for T in range(4): norm(T, pv0[7] + T + 1)
    phase(60, 64, fin)
    req = {}
    req.setdefault(qk0[1] + 2, []).append("negm")
    if cfg.guard == "sum":
        for c in range(8):
            req.setdefault(pv0[c], []).append(f"exp{c}_1")
            if c >= 1: req[pv0[c]].append(f"chk{c}")
    else:
        for c in range(2, 8): req.setdefault(qk0[c], []).append(f"exp{c-2}_1"); req[qk0[c]].append(f"glue{c-1}")
        for c in range(8):
            req.setdefault(pv0[c], []).append(f"exp{c}_1")
            if c >= 1: req[pv0[c]].append(f"resc{c}")
    bar = {6: ["V0", "K2"], 14: ["V1", "K3"], 22: ["V2", "K4"], 30: ["V3", "K5"], 38: ["V4", "K6"], 46: ["V5", "K7"], 54: ["V6", "V7"], 59: []}
    fb = lambda n: A_FB + (n % NFB) * 16
    emitted = set(); qi = 0
    def emit_item():
        nonlocal qi
        t, mu, idn, cost = vq[qi]; qi += 1
        if callable(t): t()
        else: k(t)
        if idn: emitted.add(idn)
        return cost
    def emit_cycles(n_unit, cyc):
        c = 0
        while c < cyc and qi < len(vq) and vq[qi][1] <= n_unit:
            c += emit_item()
        return c
    def flush_until(idn, n_unit):
        while idn not in emitted:
            assert vq[qi][1] <= n_unit, (idn, vq[qi], n_unit)
            emit_item()
    k.wait_vm("K1")
    k("s_barrier")
    stamp(k, cfg, 3)
    rstamp(k, cfg, 1)
    for m in range(D):
        for rd in units[m]["reads"]: k(rd(fb(m)))
    ust = {} if cfg.prof else {6: 4, 14: 5, 22: 6, 30: 7, 38: 8, 54: 10}
    aq = []
    last_park = {}
    plan = [("kv", kd, c, mu) for kd, c, mu in cfg.kvplan if c != 99] + list(cfg.w2plan)
    plan.sort(key=lambda ev: ev[-1])
    ncond = [0]
    for ev in plan:
        if ev[0] == "kv":
            _, kind, c, mu = ev
            idx = ORDER.index((kind, c))
            if idx < cfg.nB: continue
            its = kv_items(cfg, kind, c, f"{kind}{c}")
            if idx < cfg.nA:
                def f(kind=kind, c=c, its=its):
                    ncond[0] += 1; lb = f"L_cd{ncond[0]}"
                    k(f"s_cmp_eq_u32 {S_TYPE}, 0")
                    k(f"s_cbranch_scc1 {lb}")
                    k.cond_begin(None, allow_vm=True)
                    emit_items(k, its)
                    k.cond_end()
                    k.label(lb)
                aq.append(("dma", f, mu))
            else:
                for g in its:
                    def f(kind=kind, c=c, g=g): emit_items(k, [g])
                    aq.append(("dma", f, mu))
        elif ev[0] == "w2":
            _, c, reg, mu = ev
            prev = last_park.get(reg)
            for h in range(2):
                for t in range(4):
                    def f(c=c, reg=reg, h=h, t=t, prev=prev):
                        if h == 0 and t == 0:
                            if prev is not None: k.need(pkr(prev, 0, 32))
                            k(f"s_add_u32 {S_T2}, {S_ROT}, {c}")
                            k(f"s_and_b32 {S_T2}, {S_T2}, 15")
                            k(f"s_lshl_b32 {S_T2}, {S_T2}, 15")
                        if t == 0:
                            k(f"s_add_u32 m0, {S_W8K}, {reg + h*4096}")
                            if h: k(f"s_add_u32 {S_T2}, {S_T2}, 16384")
                            else: k("s_nop 0")
                        off = f" offset:{t*1024}" if t else ""
                        k(f"buffer_load_dwordx4 {vr(V_WD+t)}, {SWO}, {S_T2} offen{off}{POLW[0]} lds", tag=f"w2_{c}")
                    aq.append(("dma", f, mu))
        else:
            _, c, reg, slot, mu = ev
            last_park[reg] = slot
            for T in range(4):
                for e in range(2):
                    for hh in range(2):
                        def f(c=c, reg=reg, slot=slot, T=T, e=e, hh=hh):
                            if T == 0 and e == 0 and hh == 0:
                                k.wait_vm(f"w2_{c}")
                                k(f"s_add_u32 {S_T1}, {S_W8K}, {reg}")
                            if e == 0 and hh == 0:
                                k(f"v_add_u32 {T2}, {S_T1}, {vr(VA0+T)}")
                            k(f"ds_read_b64_tr_b16 {pkr(slot, e*16 + 4*T + 2*hh, 2)}, {T2} offset:{16*e*256 + 2048*hh}")
                        aq.append(("lds", f, mu))
    extra = [0]; debt = [0]
    def carry_aux(m):
        if any(mu <= m for kd, f, mu in aq[ai[0]:ai[0]+1]): return 3
        return 0
    ai = [0]
    def emit_aux(n_unit, ndma, nlds):
        cd = cl_ = 0
        while ai[0] < len(aq):
            kind, f, mu = aq[ai[0]]
            if mu > n_unit: break
            if kind == "dma":
                if cd >= ndma: break
                cd += 1
            else:
                if cl_ >= nlds: break
                cl_ += 1
            f(); ai[0] += 1
        return cd, cl_
    for n, u in enumerate(units):
        if n in bar:
            if n in ust: stamp(k, cfg, ust[n])
            bi_ = sorted(bar).index(n)
            if bi_ < 7: rstamp(k, cfg, 2 + 2*bi_)
            for tg in bar[n]:
                while any(f.__defaults__ and tg == f"{f.__defaults__[0]}{f.__defaults__[1]}" for kd, f, mu in aq[ai[0]:]):
                    aq[ai[0]][1](); ai[0] += 1
                k.wait_vm(tg)
            k("s_barrier")
            if bi_ < 7: rstamp(k, cfg, 3 + 2*bi_)
        for idn in req.get(n, []): flush_until(idn, n)
        k.need(ar(fb(n), 16))
        if (n + D) in kadj:
            dl = kadj[n + D]
            for s in range(8):
                k(f"v_add_u32 {vr(V_KA+s)}, {dl & 0xffffffff:#x}, {vr(V_KA+s)}")
        nxt = units[n+D]["reads"] if n + D < NU else []
        nr = len(nxt)
        ph = [p for p in phases if p[0] <= n < p[1]]
        dleft, lleft = cfg.dma_per_unit, cfg.lds_per_unit
        for x in range(4):
            k(u["mf"][x](fb(n)))
            rds = nxt[(nr*x)//4:(nr*(x+1))//4]
            for rd in rds: k(rd(fb(n+D)))
            nd = 1 if (dleft > 0 and (x % max(1, 4 // cfg.dma_per_unit) == 0)) else 0
            nl = -(-lleft // (4 - x))
            cd, cl_ = emit_aux(n, nd, nl)
            dleft -= cd; lleft -= cl_
            if ph:
                u0, u1, i0, i1 = ph[0]
                rem = sum(v[3] for v in vq[qi:i1])
                fixed = 0; gaps_left = 0
                for m in range(n, u1):
                    nrm = len(units[m+D]["reads"]) if m + D < NU else 0
                    for y in range(4):
                        if m == n and y <= x: continue
                        fixed += 8 + 4 * ((nrm*(y+1))//4 - (nrm*y)//4) + carry_aux(m)
                        gaps_left += 1
                used = 8 + 4 * (len(rds) + cd + cl_) + extra[0]
                extra[0] = 0
                target = (rem + fixed + used) / (gaps_left + 1)
                budget = target - used + debt[0]
                c = 0
                while qi < i1 and vq[qi][1] <= n and c + vq[qi][3] / 2 <= budget:
                    c += emit_item()
                debt[0] = max(-16, min(16, budget - c)) if gaps_left else 0
    while qi < len(vq): emit_item()
    while ai[0] < len(aq):
        aq[ai[0]][1](); ai[0] += 1

def oproj(k, cfg):
    k(f"s_lshl_b32 {S_T0}, {S_B}, 3")
    k(f"v_mov_b32 {vr(V_T0)}, {S_T0}")
    k(f"global_load_dword v{V_NON}, {vr(V_T0)}, s[{S_DBG}:{S_DBG+1}] sc1", tag="nonce")
    for T in range(4):
        k(f"v_add_u32 {vr(V_WA+T)}, {S_W8K}, {vr(VA0+T)}")
        k(f"v_add_u32 {vr(V_WA+4+T)}, 65536, {vr(V_WA+T)}")
        k(f"v_add_u32 {vr(V_WA+8+T)}, 131072, {vr(V_WA+T)}")
    k.wait_lgkm_all()
    k("s_barrier")
    stamp(k, cfg, 9)
    resident = {}
    parked = {}
    for ev in cfg.w2plan:
        if ev[0] == "w2": resident[ev[1]] = ev[2]
        elif ev[0] == "park":
            parked[ev[1]] = ev[3]; del resident[ev[1]]
    streamed = [c for c in range(16) if c not in resident and c not in parked]
    order = list(resident.keys())
    pk = list(parked.keys()); st = list(streamed)
    while pk or st:
        if pk: order.append(pk.pop(0))
        if st: order.append(st.pop(0))
    region = dict(resident)
    free_regions = [r for r in ((P3, P1, P4, P0) if MAP2 else (P2, P3, P4, P0)) if r not in resident.values()]
    todo = list(streamed)
    opend = []
    def launch_streams(now=False):
        while free_regions and todo:
            c = todo.pop(0); r = free_regions.pop(0); region[c] = r
            if cfg.ospread and not now:
                opend.extend(w2_items(c, r))
            else:
                w2_dma(k, c, r)
    launch_streams(True)
    steps = [(c, e) for c in order for e in range(2)]
    def reads(i):
        c, e = steps[i]
        out = []
        if e == 0:
            out.append(f"s_add_u32 {S_T1}, {S_ROT}, {c}")
            out.append(f"s_and_b32 {S_T1}, {S_T1}, 15")
            out.append(f"s_lshl_b32 {S_T1}, {S_T1}, 11")
            out.append(f"s_add_u32 {S_T1}, {S_T1}, {OEX}")
            out.append(f"v_add_u32 {vr(V_OB)}, {S_T1}, {vr(V_L16)}")
        out.append(f"ds_read_b128 {vr(V_OBF + (i%3)*4, 4)}, {vr(V_OB)} offset:{e*1024}")
        if c not in parked:
            reg = region[c]; bi = reg // 65536
            for T in range(4):
                off = (reg - bi*65536) + 16*e*256
                fbv = V_OF + (i % 3)*16 + 4*T
                out.append(f"ds_read_b64_tr_b16 {vr(fbv,2)}, {vr(V_WA + 4*bi + T)} offset:{off}")
                out.append(f"ds_read_b64_tr_b16 {vr(fbv+2,2)}, {vr(V_WA + 4*bi + T)} offset:{off+2048}")
        return out
    def afrag(i, T):
        c, e = steps[i]
        if c in parked: return pkr(parked[c], e*16 + 4*T, 4)
        return vr(V_OF + (i % 3)*16 + 4*T, 4)
    def pre(i):
        c, e = steps[i]
        if e == 0 and c not in parked:
            while any(isinstance(x, tuple) and x[1] == f"w2_{c}" for g in opend for x in g):
                emit_items(k, opend[:1]); del opend[:1]
            k.wait_vm(f"w2_{c}")
    for i in range(2):
        pre(i)
        for x in reads(i): k(x)
    for i, (c, e) in enumerate(steps):
        k.need(vr(V_OBF + (i % 3)*4, 4))
        if c in parked: k.need(pkr(parked[c], e*16, 16))
        else: k.need(vr(V_OF + (i % 3)*16, 16))
        if e == 1 and c not in parked:
            free_regions.append(region[c]); launch_streams()
        nx = []
        if i + 2 < len(steps):
            pre(i + 2)
            nx = reads(i + 2)
        n = len(nx)
        for T in range(4):
            d = vr(V_OD + 16*T, 16)
            cc = "0" if i == 0 else d
            k(f"v_mfma_f32_32x32x16_bf16 {d}, {afrag(i, T)}, {vr(V_OBF + (i%3)*4, 4)}, {cc}")
            for x in nx[(n*T)//4:(n*(T+1))//4]: k(x)
            if opend:
                emit_items(k, opend[:1]); del opend[:1]

def build(cfg, path):
    k = gen(cfg, KN)
    t = k.finish()
    s = HEADER + "; @launch grid=(256,1,1) block=(256,1,1) lds=163840\n"
    s += '.amdgcn_target "amdgcn-amd-amdhsa--gfx950"\n' + t + "L_code_end:\n" + kernel_desc(KN, vgpr=512, sgpr=100, accum=256)
    open(path, "w").write(s)
    print(path, k.stats)

if __name__ == "__main__":
    build(Cfg(), "v5.s")
    build(Cfg(stamps=True), "v5_st.s")
    build(Cfg(stamps=True, stampop="s_memtime"), "v5_sc.s")
    build(Cfg(thr=f2u(-1.0e30) if False else 0), "v5_thr0.s")
```

```python
import re

REG_RE = re.compile(r'(?<![\w.])([vas])(?:(\d+)|\[(\d+):(\d+)\])(?![\w])')

def parse_regs(tok):
    out = []
    tok = tok.strip()
    for m in REG_RE.finditer(tok):
        f = m.group(1)
        if m.group(2) is not None:
            out.append((f, int(m.group(2))))
        else:
            out += [(f, i) for i in range(int(m.group(3)), int(m.group(4)) + 1)]
    if re.search(r'\bvcc\b', tok): out += [('s', 106), ('s', 107)]
    if re.search(r'\bvcc_lo\b', tok): out += [('s', 106)]
    if re.search(r'\bexec\b', tok): out += [('s', 126), ('s', 127)]
    if re.search(r'\bm0\b', tok): out += [('s', 124)]
    return out

TRANS = ("v_exp_f32", "v_log_f32", "v_rcp_f32", "v_rsq_f32", "v_sqrt_f32", "v_sin_f32", "v_cos_f32")

class Ins:
    __slots__ = ("text", "op", "kind", "dst", "src", "tag", "passes", "srcC", "srcAB", "comment")
    def __init__(self, text, tag=None):
        self.text = text.strip()
        self.tag = tag
        t = self.text.split(";")[0].strip()
        parts = t.split(None, 1)
        self.op = parts[0]
        ops = []
        if len(parts) > 1:
            cur = ""; d = 0
            for ch in parts[1]:
                if ch == "[": d += 1
                if ch == "]": d -= 1
                if ch == "," and d == 0:
                    ops.append(cur); cur = ""
                else:
                    cur += ch
            ops.append(cur)
        op = self.op
        self.passes = 0; self.srcC = []; self.srcAB = []
        R = [parse_regs(o) for o in ops]
        flat = lambda L: [x for l in L for x in l]
        if op.endswith(":"):
            self.kind = "label"; self.dst = []; self.src = []
        elif op.startswith("v_mfma"):
            self.kind = "mfma"; self.dst = R[0]; self.srcAB = R[1] + R[2]; self.srcC = R[3] if len(R) > 3 else []
            self.src = self.srcAB + self.srcC
            self.passes = 8 if "32x32x16" in op else 4 if "16x16x32" in op else None
            assert self.passes
        elif op.startswith("ds_read"):
            self.kind = "ds_read"; self.dst = R[0]; self.src = flat(R[1:])
        elif op.startswith("ds_write") or op.startswith("ds_add"):
            self.kind = "ds_write"; self.dst = []; self.src = flat(R)
        elif op.startswith("ds_bpermute") or op.startswith("ds_swizzle"):
            self.kind = "ds_read"; self.dst = R[0]; self.src = flat(R[1:])
        elif op.startswith("buffer_load") or op.startswith("global_load"):
            if re.search(r'\blds\b', t) or "_lds_" in op:
                self.kind = "dma"; self.dst = []; self.src = flat(R) + [('s', 124)]
            else:
                self.kind = "vload"; self.dst = R[0]; self.src = flat(R[1:])
        elif op.startswith("buffer_store") or op.startswith("global_store"):
            self.kind = "vstore"; self.dst = []; self.src = flat(R)
        elif op.startswith("buffer_atomic") or op.startswith("global_atomic"):
            self.kind = "vstore"; self.dst = []; self.src = flat(R)
            if re.search(r'\bsc0\b', t):
                self.kind = "vload"
                self.dst = R[0]
        elif op in ("buffer_wbl2", "buffer_inv"):
            self.kind = "vstore"; self.dst = []; self.src = []
        elif op.startswith("s_load") or op in ("s_memtime", "s_memrealtime"):
            self.kind = "smem"; self.dst = R[0]; self.src = flat(R[1:])
        elif op == "s_waitcnt":
            self.kind = "wait"; self.dst = []; self.src = []
        elif op == "s_nop":
            self.kind = "nop"; self.dst = []; self.src = []
        elif op == "s_barrier":
            self.kind = "barrier"; self.dst = []; self.src = []
        elif op.startswith("s_cbranch") or op in ("s_branch", "s_endpgm", "s_sleep", "s_setprio"):
            self.kind = "ctl"; self.dst = []; self.src = flat(R)
        elif op.startswith("s_cmp"):
            self.kind = "salu"; self.dst = []; self.src = flat(R)
        elif op.startswith("s_"):
            self.kind = "salu"; self.dst = R[0] if R else []; self.src = flat(R[1:])
        elif op.startswith("v_"):
            self.kind = "trans" if any(op.startswith(x) for x in TRANS) else "valu"
            self.dst = list(R[0]); self.src = flat(R[1:])
            if op.startswith("v_permlane16_swap") or op.startswith("v_permlane32_swap"):
                self.kind = "permswap"; self.dst = R[0] + R[1]; self.src = R[0] + R[1]
            elif op.startswith("v_fmac") or op.startswith("v_dot2c") or op.startswith("v_writelane"):
                self.src = self.src + R[0]
            elif op.startswith("v_cmp"):
                pass
            elif op.startswith("v_add_co") or op.startswith("v_sub_co") or op.startswith("v_addc_co") or op.startswith("v_subb_co"):
                self.dst = R[0] + R[1]; self.src = flat(R[2:])
            if op.startswith("v_cndmask") and len(R) == 3:
                self.src = self.src + [('s', 106), ('s', 107)]
            if "_dpp" in op or "row_" in t or "quad_perm" in t:
                self.kind = "dpp"
        else:
            raise ValueError("unknown op " + self.text)

class KB:
    def __init__(self):
        self.ins = []
        self.notes = []
    def __call__(self, text, tag=None):
        for l in text.strip("\n").split("\n"):
            l = l.strip()
            if not l or l.startswith(";"):
                if l: self.ins.append(("raw", "    " + l))
                continue
            self.ins.append(("ins", Ins(l, tag)))
    def label(self, name):
        self.ins.append(("label", name))
    def raw(self, s):
        self.ins.append(("raw", s))
    def comment(self, s):
        self.ins.append(("raw", "    ; " + s))
    def wait_vm(self, tag):
        self.ins.append(("wait_vm", tag))
    def wait_lg(self, tag):
        self.ins.append(("wait_lg", tag))
    def wait_vm_all(self):
        self.ins.append(("wait_vm", None))
    def wait_lgkm_all(self):
        self.ins.append(("wait_lgkm", None))
    def need(self, regs):
        self.ins.append(("need", parse_regs(regs)))
    def reset_state(self):
        self.ins.append(("reset", None))

    def cond_begin(self, ool=None, allow_vm=False):
        self.ins.append(("cond_begin", (ool, allow_vm)))
    def cond_end(self):
        self.ins.append(("cond_end", None))
    def save_state(self, name):
        self.ins.append(("save", name))
    def restore_state(self, name):
        self.ins.append(("restore", name))

    def finish(self, verbose=False):
        out = []
        side = []
        out_holder = [out]
        cond_ool = None; main_out = out; cond_allow_vm = False
        vm_q = []
        lg_q = []
        smem_out = False
        pend = {}
        lastw = {}
        lastCread = {}
        lastStore = {}
        state = 0
        stats = dict(nops=0, waits=0, n=0)
        saved = {}
        in_cond = False; cond_written = set(); cond_state = 0; cond_nvm = 0; cond_nlg = 0
        def emit(text, states=1):
            nonlocal state
            out_holder[0].append("    " + text)
            state += states
        def do_wait(vm=None, lg=None):
            parts = []
            if vm is not None:
                n = min(vm, 63)
                parts.append(f"vmcnt({n})")
                while len(vm_q) > n:
                    o = vm_q.pop(0)
                    for r in o["dst"]:
                        if pend.get(r, (None, None))[1] is o: del pend[r]
            if lg is not None:
                n = min(lg, 15)
                parts.append(f"lgkmcnt({n})")
                while len(lg_q) > n:
                    o = lg_q.pop(0)
                    for r in o["dst"]:
                        if pend.get(r, (None, None))[1] is o: del pend[r]
            if parts:
                emit("s_waitcnt " + " ".join(parts)); stats["waits"] += 1
        def wait_for_regs(regs):
            vm = None; lg = None
            for r in regs:
                if r in pend:
                    c, o = pend[r]
                    if c == "vm":
                        k = len(vm_q) - 1 - vm_q.index(o)
                        vm = k if vm is None else min(vm, k)
                    else:
                        k = len(lg_q) - 1 - lg_q.index(o)
                        lg = k if lg is None else min(lg, k)
            if vm is not None or lg is not None:
                do_wait(vm, lg)
        for kind, item in self.ins:
            if kind == "raw":
                out_holder[0].append(item); continue
            if kind == "label":
                out_holder[0].append(item + ":"); continue
            if kind == "cond_begin":
                cond_state = state; cond_nvm = len(vm_q); cond_nlg = len(lg_q); cond_written = set()
                in_cond = True
                item, cond_allow_vm = item
                cond_ool = item
                if item:
                    main_out = out_holder[0]
                    out_holder[0] = side
                    side.append(item + ":")
                continue
            if kind == "cond_end":
                assert (cond_allow_vm or len(vm_q) == cond_nvm) and len(lg_q) == cond_nlg, "memory ops or waits inside cond block"
                state = cond_state
                for r in cond_written:
                    w = lastw[r]; lastw[r] = (w[0], state - 1, w[2], w[3])
                in_cond = False
                if cond_ool:
                    side.append(f"    s_branch {cond_ool}_back")
                    out_holder[0] = main_out
                    main_out.append(cond_ool + "_back:")
                continue
            if kind == "save":
                import copy
                saved[item] = copy.deepcopy((vm_q, lg_q, pend, smem_out))
                continue
            if kind == "restore":
                import copy
                a_, b_, c_, d_ = copy.deepcopy(saved[item])
                vm_q[:] = a_; lg_q[:] = b_; pend.clear(); pend.update(c_); smem_out = d_
                emit("s_nop 15", 16)
                lastw.clear(); lastCread.clear(); lastStore.clear()
                continue
            if kind == "reset":
                assert not vm_q and not lg_q, "reset with outstanding ops"
                continue
            if kind == "wait_vm":
                if item is None:
                    if vm_q: do_wait(vm=0)
                else:
                    idx = [i for i, o in enumerate(vm_q) if o["tag"] == item]
                    if idx: do_wait(vm=len(vm_q) - 1 - idx[-1])
                continue
            if kind == "wait_lg":
                idx = [i for i, o in enumerate(lg_q) if o["tag"] == item]
                if idx: do_wait(lg=len(lg_q) - 1 - idx[-1])
                continue
            if kind == "wait_lgkm":
                if lg_q or smem_out:
                    emit("s_waitcnt lgkmcnt(0)"); stats["waits"] += 1
                    for o in lg_q:
                        for r in o["dst"]:
                            if pend.get(r, (None, None))[1] is o: del pend[r]
                    lg_q.clear(); smem_out = False
                    for r in [r for r, (c, o) in pend.items() if c == "sm"]: del pend[r]
                continue
            if kind == "need":
                wait_for_regs(item); continue
            I = item
            stats["n"] += 1
            if I.kind == "wait":
                m = re.search(r'vmcnt\((\d+)\)', I.text); v = int(m.group(1)) if m else None
                m = re.search(r'lgkmcnt\((\d+)\)', I.text); l = int(m.group(1)) if m else None
                if l == 0:
                    smem_out = False
                    for r in [r for r, (c, o) in pend.items() if c == "sm"]: del pend[r]
                do_wait(v, l); continue
            touched = I.dst + I.src
            if any(r in pend and pend[r][0] == "sm" for r in touched):
                emit("s_waitcnt lgkmcnt(0)"); stats["waits"] += 1
                for o in lg_q:
                    for r in o["dst"]:
                        if pend.get(r, (None, None))[1] is o: del pend[r]
                lg_q.clear(); smem_out = False
                for r in [r for r, (c, o) in pend.items() if c == "sm"]: del pend[r]
            wait_for_regs(touched)
            need = 0
            def req(prod_state, n):
                nonlocal need
                d = state - prod_state - 1
                if n - d > need: need = n - d
            isvalu = I.kind in ("valu", "trans", "permswap", "dpp")
            for r in I.src:
                w = lastw.get(r)
                if w is None: continue
                wk, ws, wp, wd = w
                if wk in ("valu", "trans", "permswap", "dpp") and r[0] in "va":
                    if I.kind == "mfma": req(ws, 2)
                    if I.kind == "permswap": req(ws, 2)
                    if I.kind == "dpp": req(ws, 2)
                    if I.op.startswith("v_readfirstlane") or I.op.startswith("v_readlane"): req(ws, 1)
                    if wk == "trans" and isvalu and I.kind != "trans": req(ws, 1)
                    if wk == "trans" and I.kind == "trans": req(ws, 1)
                if wk in ("valu", "trans", "permswap", "dpp") and r[0] == "s":
                    if isvalu: req(ws, 2)
                    if I.kind in ("vload", "vstore", "dma"): req(ws, 5)
                    if I.kind in ("salu", "ctl", "smem"): req(ws, 4)
                if wk == "salu" and r == ('s', 124) and I.kind == "dma": req(ws, 1)
                if wk == "mfma":
                    if I.kind == "mfma":
                        if r in I.srcC and I.srcC == wd and I.passes == wp and r not in I.srcAB:
                            pass
                        elif r in I.srcAB: req(ws, {4: 8, 8: 12}[wp])
                        else: req(ws, {4: 6, 8: 10}[wp])
                    else:
                        req(ws, {4: 8, 8: 12}[wp])
            for r in I.dst:
                w = lastw.get(r)
                if w is not None and w[0] == "mfma":
                    wk, ws, wp, wd = w
                    if I.kind == "mfma":
                        if not (I.dst == wd and I.passes == wp):
                            req(ws, {4: 6, 8: 10}[wp])
                    else:
                        req(ws, {4: 8, 8: 12}[wp])
                if r in lastCread and (isvalu or I.kind in ("vload", "ds_read")):
                    cs, cp = lastCread[r]; req(cs, {4: 3, 8: 7}[cp])
                if r in lastStore and isvalu:
                    req(lastStore[r], 2)
            if need > 0:
                stats["nops"] += need
                while need > 0:
                    k = min(need, 16)
                    emit(f"s_nop {k-1}", k); need -= k
            cur = state
            emit(I.text)
            for r in I.dst:
                lastw[r] = (I.kind, cur, I.passes, I.dst)
                if in_cond: cond_written.add(r)
            if I.kind == "mfma":
                for r in I.srcC: lastCread[r] = (cur, I.passes)
            if I.kind == "vstore" and ("x4" in I.op or "x3" in I.op):
                for r in I.src: lastStore[r] = cur
            if I.kind in ("vload", "vstore", "dma"):
                o = dict(tag=I.tag, dst=I.dst if I.kind == "vload" else [])
                vm_q.append(o)
                for r in o["dst"]: pend[r] = ("vm", o)
                if len(vm_q) > 63:
                    pass
            elif I.kind in ("ds_read", "ds_write"):
                o = dict(tag=I.tag, dst=I.dst)
                lg_q.append(o)
                for r in o["dst"]: pend[r] = ("lg", o)
                assert not smem_out, "LDS op while SMEM outstanding: " + I.text
            elif I.kind == "smem":
                smem_out = True
                for r in I.dst: pend[r] = ("sm", None)
        self.stats = stats
        return "\n".join(out + side) + "\n"
```

```python
import os
os.environ["MAP2"] = "1"
from gen5 import *
SS = {0, 1, 2, 3, 9, 14, 15, 12, 13}
base = dict(warm2=False, xpos=4, codewarm=True)
C = [("V", 1, 0), ("K", 3, 2), ("V", 2, 4), ("K", 4, 6), ("V", 3, 8), ("K", 5, 10)]
KV = C + [("V", 4, 22), ("K", 6, 24), ("V", 5, 30), ("K", 7, 32), ("V", 6, 38), ("V", 7, 40)]
M1 = dict(dma_per_unit=2, kvplan=KV, w2plan=[("w2", 0, P0, 14), ("park", 0, P0, 0, 27), ("w2", 1, P0, 28), ("park", 1, P0, 1, 43),
                                              ("w2", 2, P0, 44), ("w2", 3, P4, 48), ("w2", 4, P1, 55)])
V = {
 "x4": dict(M1),
 "mi": dict(M1, micro=True),
}
for n, kw in V.items():
    kw = dict(base, **kw)
    build(Cfg(stamps=True, stamp_set=SS, **kw), f"v7{n}_st.s")
    build(Cfg(**kw), f"v7{n}.s")
```

```python
import sys, math, struct
from kb import KB
from asmlib import HEADER, KN, kernel_desc, STAMP_OFF

def f2u(x): return struct.unpack("<I", struct.pack("<f", x))[0]
CSCALE = f2u(math.log2(math.e) / math.sqrt(128.0))
def vr(b, n=1): return f"v{b}" if n == 1 else f"v[{b}:{b+n-1}]"
def ar(b, n=1): return f"a{b}" if n == 1 else f"a[{b}:{b+n-1}]"

SX, SK, SV, SWQ, SWO, SP = "s[8:11]", "s[12:15]", "s[16:19]", "s[20:23]", "s[24:27]", "s[28:31]"
S_B, S_HKV, S_W, S_ROT = "s36", "s37", "s38", "s39"
S_SELE, S_SELO, S_C = "s40", "s41", "s42"
S_W4K = "s43"
S_T0, S_T1, S_T2, S_T3 = "s44", "s45", "s46", "s47"
S_W8K = "s48"
S_RF = "s49"
S_TYPE = "s35"
S_DBG = 92; S_WS = 94; S_OUT = 96; S_NON = 98
FLAG_OFF = 0x1000000
V_NON = 0
V_LANE = 1
V_KD = 2; V_VD = 6; V_L16 = 7
V_KA = 8
V_VA = [16, 216, 220]
V_WD = 20
V_XB = 22; V_XT = 23
V_L, V_AL, V_BM, V_T0, V_T1 = 24, 25, 26, 27, 28
V_PO = 29; V_OB = 30; V_T2 = 31
V_RAW = 32; V_S = 32
V_P = 96
V_F = 160; V_O = 128
V_QD = 176; V_W1 = 240
NRAW = 4
V_NM = 192
V_SG = 208; V_TE = 210
A_XB = 0; A_FB = 0; A_Q = 128
PK = [("a", 64), ("a", 96), ("a", 160), ("a", 192), ("a", 224), ("v", 224)]
def pkr(slot, off, n):
    f, b = PK[slot]
    return ar(b + off, n) if f == "a" else vr(b + off, n)
V_OD = 128
V_OF = 64
V_OBF = 112
V_WA = 32
SLOT = 16384
P0, P1, P2, P3, P4 = 0, 2*SLOT, 4*SLOT, 6*SLOT, 8*SLOT
XS = P4
import os
MAP2 = os.environ.get("MAP2") == "1"
if MAP2:
    KSLOT = {0: 0, 1: 1, 2: 2, 3: 4, 4: 6, 5: 8, 6: 2, 7: 4}
    VSLOT = {0: 3, 1: 5, 2: 7, 3: 9, 4: 3, 5: 5, 6: 7, 7: 6}
else:
    KSLOT = {0: 0, 1: 1, 2: 2, 3: 4, 4: 6, 5: 8, 6: 1, 7: 2}
    VSLOT = {0: 3, 1: 5, 2: 7, 3: 9, 4: 0, 5: 3, 6: 5, 7: 4}
ORDER = [("K", 0), ("K", 1), ("V", 0), ("K", 2), ("V", 1), ("K", 3), ("V", 2), ("K", 4), ("V", 3), ("K", 5), ("V", 4), ("K", 6), ("V", 5), ("K", 7), ("V", 6), ("V", 7)]
LATE = [("V", 4), ("K", 6), ("V", 5), ("K", 7), ("V", 6), ("V", 7)]
A_KV = 160
OEX = P2 if MAP2 else P1
VA0 = V_VA[0]
THR = 0x41000000

class Cfg:
    nA = 8
    nB = 4
    varsel = "b"
    kvpol = " nt"
    stamps = False
    stamp_set = None
    twice = False
    stampop = "s_memrealtime"
    D = 2
    stpol = " sc1"
    ldpol = " sc1"
    pbf16 = True
    sleep = 2
    dbgtime = False
    fullpre = False
    warm1 = True
    warm2 = True
    burst = False
    micro = False
    touch0 = False
    outpol = ""
    bdist = 3
    ospread = False
    chk = False
    codewarm = False
    bdelay = 0
    touch = False
    xpol = ""
    wflags = False
    warmA = True
    warmB = True
    bfirst = "x"
    prof2 = False
    tmask = 0xAA
    hmask = None
    bmask = 1
    bval = 1
    a_extra = False
    wpol = ""
    hack2 = None
    guard = "sum"
    sumthr = 0x44800000
    xpos = 6
    prof = False
    hack = None
    skew = 0
    warm2_step = 6
    kvplan = [("V", 1, 0), ("K", 3, 2), ("V", 2, 4), ("K", 4, 6), ("V", 3, 8), ("K", 5, 10), ("V", 4, 14), ("K", 6, 16),
              ("V", 5, 22), ("K", 7, 24), ("V", 6, 30), ("K", 99, 0), ("V", 7, 32)]
    w2plan = [("w2", 0, P3, 38), ("w2", 1, P4, 46), ("w2", 2, P0, 54)]
    dma_per_unit = 2
    lds_per_unit = 6
    thr = THR
    def __init__(self, **kw):
        for k, v in kw.items(): setattr(self, k, v)

def rstamp(k, cfg, i):
    if cfg.prof2: k.raw(f"    s_memrealtime s[{60+2*i}:{61+2*i}]")

def stamp(k, cfg, i):
    if cfg.prof2 and i not in (0,): return
    if cfg.stamps and (cfg.stamp_set is None or i in cfg.stamp_set):
        k(f"{cfg.stampop} s[{60+2*i}:{61+2*i}]")
        k("s_waitcnt lgkmcnt(0)")

def srd(k, d, lo, hi, size):
    k(f"s_mov_b32 s{d}, {lo}")
    k(f"s_and_b32 s{d+1}, {hi}, 0xffff")
    k(f"s_mov_b32 s{d+2}, {size}")
    k(f"s_mov_b32 s{d+3}, 0x20000")

def dma_chunk(k, cfg, kind, c, tag):
    slot = KSLOT[c] if kind == "K" else VSLOT[c]
    k(f"s_add_u32 m0, {S_W4K}, {slot*SLOT}")
    k(f"s_add_u32 {S_T3}, {S_W4K}, {c*SLOT}")
    for t in range(4):
        vo = vr(V_KD + t) if kind == "K" else vr(V_VD)
        sr = SK if kind == "K" else SV
        off = f" offset:{t*1024}" if t else ""
        k(f"buffer_load_dwordx4 {vo}, {sr}, {S_T3} offen{off}{cfg.kvpol} lds", tag=tag)

def w1_items(step, buf):
    out = [[f"s_add_u32 {S_T0}, {S_ROT}, {step}", f"s_and_b32 {S_T0}, {S_T0}, 15", f"s_lshl_b32 {S_T0}, {S_T0}, 18"]]
    for j in range(8):
        t = (f"buffer_load_dwordx4 {vr(V_RAW + buf*32 + 4*j, 4)}, {vr(V_W1 + j)}, {SWQ}, {S_T0} offen{POLW[0]}", f"w1_{step}")
        if j == 0: out[0].append(t)
        else: out.append([t])
    return out

def emit_items(k, items):
    for grp in items:
        for x in grp:
            if callable(x): x()
            elif isinstance(x, tuple): k(x[0], tag=x[1])
            else: k(x)

def w1_loads(k, step, buf):
    emit_items(k, w1_items(step, buf))

def kv_items(cfg, kind, c, tag, agpr=None):
    slot = KSLOT[c] if kind == "K" else VSLOT[c]
    out = []
    for t in range(4):
        g = []
        if t == 0:
            if agpr is None: g.append(f"s_add_u32 m0, {S_W4K}, {slot*SLOT}")
            g.append(f"s_add_u32 {S_T3}, {S_W4K}, {c*SLOT}")
        vo = vr(V_KD + t) if kind == "K" else vr(V_VD)
        sr = SK if kind == "K" else SV
        off = f" offset:{t*1024}" if t else ""
        if agpr is None:
            g.append((f"buffer_load_dwordx4 {vo}, {sr}, {S_T3} offen{off}{cfg.kvpol} lds", tag))
        else:
            g.append((f"buffer_load_dwordx4 {ar(agpr + 4*t, 4)}, {vo}, {sr}, {S_T3} offen{off}{cfg.kvpol}", tag))
        out.append(g)
    return out

def w2_dma(k, c, reg):
    k(f"s_add_u32 {S_T0}, {S_ROT}, {c}")
    k(f"s_and_b32 {S_T0}, {S_T0}, 15")
    k(f"s_lshl_b32 {S_T0}, {S_T0}, 15")
    for h in range(2):
        k(f"s_add_u32 m0, {S_W8K}, {reg + h*4096}")
        if h: k(f"s_add_u32 {S_T0}, {S_T0}, 16384")
        else: k("s_nop 0")
        for t in range(4):
            off = f" offset:{t*1024}" if t else ""
            k(f"buffer_load_dwordx4 {vr(V_WD+t)}, {SWO}, {S_T0} offen{off}{POLW[0]} lds", tag=f"w2_{c}")

HACK = [None]
POLW = ['']
def w2_items(c, reg):
    out = []
    for h in range(2):
        for t in range(4):
            g = []
            if h == 0 and t == 0:
                g += [f"s_add_u32 {S_T0}, {S_ROT}, {c}", f"s_and_b32 {S_T0}, {S_T0}, 15", f"s_lshl_b32 {S_T0}, {S_T0}, 15"]
            if t == 0:
                g.append(f"s_add_u32 m0, {S_W8K}, {reg + h*4096}")
                g.append(f"s_add_u32 {S_T0}, {S_T0}, 16384" if h else "s_nop 0")
            off = f" offset:{t*1024}" if t else ""
            g.append((f"buffer_load_dwordx4 {vr(V_WD+t)}, {SWO}, {S_T0} offen{off}{POLW[0]} lds", f"w2_{c}"))
            out.append(g)
    return out

def proj_step(k, buf, acc, bfrag, first, fbase, extra=()):
    raw = V_RAW + buf*32
    extra = list(extra)
    if HACK[0] == "nocompute":
        k.need(vr(raw, 32)); emit_items(k, extra); return
    if HACK[0] == "noloads":
        extra = [g for g in extra if not any(isinstance(x, tuple) and x[1].startswith("w1_") for x in g)]
    if HACK[0] == "noperm":
        k.need(vr(raw, 32))
        ne = len(extra); done = 0
        for i in range(8):
            for qh in range(2):
                d = vr(acc + (i*2+qh)*4, 4)
                k(f"v_mfma_f32_16x16x32_bf16 {d}, {vr(raw + 4*i, 4)}, {bfrag(qh)}, {'0' if first else d}")
                upto = (ne * (i*2+qh + 1)) // 16
                emit_items(k, extra[done:upto]); done = upto
        return
    def perms(i):
        f = fbase + (i & 3) * 4
        sel = S_SELO if i & 1 else S_SELE
        return [f"v_perm_b32 {vr(f+u)}, {vr(raw + 4*(2*u+1) + (i>>1))}, {vr(raw + 4*(2*u) + (i>>1))}, {sel}" for u in range(4)]
    k.need(vr(raw, 32))
    k.need(bfrag(0)); k.need(bfrag(1))
    for x in perms(0): k(x)
    ne = len(extra); done = 0
    for i in range(8):
        nxt = perms(i+1) if i < 7 else []
        f = fbase + (i & 3) * 4
        for qh in range(2):
            d = vr(acc + (i*2+qh)*4, 4)
            c = "0" if first else d
            for x in nxt[2*qh:2*qh+2]: k(x)
            k(f"v_mfma_f32_16x16x32_bf16 {d}, {vr(f,4)}, {bfrag(qh)}, {c}")
            slot = i*2 + qh
            upto = (ne * (slot + 1)) // 16
            emit_items(k, extra[done:upto]); done = upto

def gen(cfg, name):
    HACK[0] = cfg.hack
    POLW[0] = cfg.wpol
    k = KB()
    k.raw(".text"); k.raw(f".globl {name}"); k.raw(".p2align 8"); k.raw(f".type {name},@function"); k.raw(f"{name}:")
    stamp(k, cfg, 0)
    if cfg.dbgtime:
        k("s_memrealtime s[60:61]"); k("s_memtime s[62:63]")
    k("s_cmp_ge_u32 s2, 256")
    k(f"s_cbranch_scc1 L_end")
    k("s_load_dwordx4 s[44:47], s[0:1], 0")
    k("s_load_dwordx4 s[48:51], s[0:1], 16")
    k("s_load_dwordx4 s[52:55], s[0:1], 32")
    k("s_load_dwordx4 s[56:59], s[0:1], 48")
    k(f"s_memrealtime s[{S_NON}:{S_NON+1}]")
    L = vr(V_LANE)
    T0, T1, T2, T3 = "v28", "v29", "v30", "v31"
    k(f"v_and_b32 {L}, 63, v0")
    k("v_lshrrev_b32 v2, 6, v0")
    k(f"v_readfirstlane_b32 {S_W}, v2")
    k(f"s_lshr_b32 {S_B}, s2, 3")
    k(f"s_and_b32 {S_HKV}, s2, 7")
    k(f"s_and_b32 {S_ROT}, {S_B}, 15")
    k(f"s_and_b32 s33, {S_W}, 1"); k(f"s_lshl_b32 s33, s33, 3")
    k(f"v_xor_b32 {T0}, s33, {L}")
    for i in range(8):
        k(f"v_xor_b32 {vr(V_RAW+96+i)}, {i}, {T0}")
        k(f"v_lshlrev_b32 {vr(V_RAW+96+i)}, 4, {vr(V_RAW+96+i)}")
    k(f"v_and_b32 {T0}, 15, {L}")
    k(f"v_lshrrev_b32 {T1}, 4, {L}")
    k(f"v_xor_b32 {T2}, {T0}, {T1}")
    k(f"v_lshlrev_b32 {T2}, 4, {T2}")
    k(f"v_lshl_add_u32 {vr(V_KD)}, {T1}, 8, {T2}")
    for t in range(1, 4):
        k(f"v_xor_b32 {vr(V_KD+t)}, {t << 6}, {vr(V_KD)}")
    k(f"v_lshlrev_b32 {T2}, 2, {T1}")
    k(f"v_xor_b32 {T2}, {T0}, {T2}")
    k(f"v_lshlrev_b32 {T2}, 4, {T2}")
    k(f"v_lshl_add_u32 {vr(V_VD)}, {T1}, 8, {T2}")
    k(f"v_lshlrev_b32 {T2}, 16, {T1}")
    k(f"v_lshl_add_u32 {T2}, {T0}, 4, {T2}")
    k(f"s_lshl_b32 s34, {S_HKV}, 10"); k(f"s_lshl_b32 s35, {S_W}, 8"); k(f"s_add_u32 s34, s34, s35")
    k(f"v_add_u32 {vr(V_W1)}, s34, {T2}")
    for j in range(1, 8):
        k(f"v_add_u32 {vr(V_W1+j)}, {j*8192}, {vr(V_W1)}")
    k(f"s_lshl_b32 s34, {S_W}, 13")
    k(f"s_lshl_b32 {S_W4K}, {S_W}, 12")
    k(f"v_lshlrev_b32 {vr(V_L16)}, 4, {L}")
    if cfg.hmask is not None:
        k(f"s_lshr_b32 {S_TYPE}, {cfg.hmask}, {S_HKV}")
    else:
        k(f"s_and_b32 {S_TYPE}, {S_B}, 7")
        k(f"s_lshr_b32 {S_TYPE}, {cfg.tmask}, {S_TYPE}")
    k(f"s_and_b32 {S_TYPE}, {S_TYPE}, 1")
    k("s_lshl_b32 s33, s2, 19"); k("s_add_u32 s33, s33, 393216")
    k("s_waitcnt lgkmcnt(0)")
    k("s_add_u32 s46, s46, s33"); k("s_addc_u32 s47, s47, 0")
    srd(k, 12, "s46", "s47", 131072)
    k("s_add_u32 s48, s48, s33"); k("s_addc_u32 s49, s49, 0")
    srd(k, 16, "s48", "s49", 131072)
    if cfg.touch0:
        k(f"v_mov_b32 {T2}, 0")
        k(f"buffer_load_dword a149, {T2}, {SV}, 0 offen nt", tag="t0")
        k(f"buffer_load_dword a150, {T2}, {SK}, 0 offen nt", tag="t0")
        k(f"s_lshl_b32 s33, {S_B}, 15"); k(f"v_mov_b32 {T3}, s33")
        k(f"global_load_dword a151, {T3}, s[44:45]", tag="t0")

    def setup_wq():
        srd(k, 20, "s50", "s51", 4194304)
    def warm1():
        k(f"s_lshl_b32 s33, {S_B}, 2"); k(f"s_add_u32 s33, s33, {S_W}"); k("s_lshl_b32 s33, s33, 15")
        k(f"s_lshl_b32 s32, {S_HKV}, 10"); k("s_add_u32 s33, s33, s32")
        for i in range(4):
            k(f"buffer_load_dwordx4 {ar(128 + 4*i, 4)}, {vr(V_L16)}, {SWQ}, s33 offen", tag="warm")
            if i < 3: k("s_add_u32 s33, s33, 8192")
    def setup_x():
        k(f"s_lshl_b32 s33, {S_B}, 15")
        k("s_add_u32 s44, s44, s33"); k("s_addc_u32 s45, s45, 0")
        srd(k, 8, "s44", "s45", 32768)
        for h in range(2):
            k(f"s_add_u32 m0, s34, {XS + h*4096}")
            k(f"s_add_u32 s32, s34, {h*4096}")
            for i in range(4):
                off = f" offset:{i*1024}" if i else ""
                k(f"buffer_load_dwordx4 {vr(V_RAW + 96 + 4*h + i)}, {SX}, s32 offen{off}{cfg.xpol} lds", tag="x")

    nlead = [0]
    def setup_rest():
        nlead[0] += 1
        k(f"s_or_b32 s33, {S_HKV}, {S_W}")
        k(f"s_or_b32 s{S_NON}, s{S_NON}, 1")
        k(f"s_lshl_b32 s32, {S_B}, 3")
        k(f"v_mov_b32 {T2}, s32"); k(f"v_mov_b32 {T3}, s{S_NON}")
        k("s_cmp_lg_u32 s33, 0")
        k.raw(f"    s_cbranch_scc1 L_nolead{nlead[0]}")
        k.raw("    s_mov_b64 exec, 1")
        k.raw(f"    global_store_dword {T2}, {T3}, s[56:57] sc1")
        k.raw("    s_mov_b64 exec, -1")
        k.raw(f"L_nolead{nlead[0]}:")
        k(f"s_lshl_b32 s33, {S_HKV}, 19")
        k("s_add_u32 s52, s52, s33"); k("s_addc_u32 s53, s53, 0")
        srd(k, 24, "s52", "s53", 524288)
        k("s_lshl_b32 s33, s2, 16")
        k("s_add_u32 s50, s58, s33"); k("s_addc_u32 s51, s59, 0")
        srd(k, 28, "s50", "s51", 65536)
        k(f"s_mov_b32 s{S_DBG}, s56"); k(f"s_mov_b32 s{S_DBG+1}, s57")
        k(f"s_mov_b32 s{S_WS}, s58"); k(f"s_mov_b32 s{S_WS+1}, s59")
        k(f"s_mov_b32 s{S_OUT}, s54"); k(f"s_mov_b32 s{S_OUT+1}, s55")
        if cfg.touch:
            k(f"s_lshl_b32 s33, {S_B}, 19"); k(f"v_mov_b32 {T2}, s33")
            k(f"global_load_dword a144, {T2}, s[58:59]", tag="touch")
            k(f"s_lshl_b32 s33, {S_B}, 7"); k(f"s_add_u32 s33, s33, {FLAG_OFF}"); k(f"v_mov_b32 {T2}, s33")
            k(f"global_load_dword a145, {T2}, s[58:59]", tag="touch")
            k(f"s_lshl_b32 s33, {S_B}, 15"); k(f"v_mov_b32 {T2}, s33")
            k(f"global_load_dword a146, {T2}, s[54:55]", tag="touch")
            k(f"s_lshl_b32 s33, {S_B}, 14"); k(f"v_mov_b32 {T2}, s33")
            k(f"global_load_dword a147, {T2}, s[52:53]", tag="touch")
        if cfg.codewarm:
            n_ = nlead[0]
            k.raw("    s_getpc_b64 s[32:33]")
            k.raw(f"L_pc{n_}:")
            k.raw(f"    s_sub_u32 s32, s32, L_pc{n_}-{KN}")
            k.raw("    s_subb_u32 s33, s33, 0")
            k(f"s_and_b32 s50, {S_B}, 7"); k("s_lshl_b32 s50, s50, 13")
            k(f"v_lshlrev_b32 {T2}, 7, {L}")
            k(f"v_add_u32 {T2}, s50, {T2}")
            k.raw(f"    v_min_u32 {T2}, L_code_end-{KN}-4, {T2}")
            k(f"global_load_dword a148, {T2}, s[32:33]", tag="cw")
        k(f"s_mov_b32 {S_SELE}, 0x05040100")
        k(f"s_mov_b32 {S_SELO}, 0x07060302")
        k(f"s_mov_b32 {S_C}, {CSCALE:#x}")
        k(f"s_lshl_b32 {S_W8K}, {S_W}, 13")

    def addr_calcs():
        k(f"v_lshlrev_b32 {vr(V_XB)}, 10, {T0}")
        k(f"v_lshrrev_b32 {T2}, 2, {T0}")
        k(f"v_lshl_add_u32 {vr(V_XB)}, {T2}, 6, {vr(V_XB)}")
        k(f"v_and_b32 {T2}, 3, {T0}")
        k(f"v_xor_b32 {T2}, {T2}, {T1}")
        k(f"v_lshl_add_u32 {vr(V_XB)}, {T2}, 4, {vr(V_XB)}")
        k(f"v_add_u32 {vr(V_XB)}, {XS}, {vr(V_XB)}")
        k(f"v_and_b32 {T2}, 31, {L}")
        k(f"v_lshrrev_b32 {T3}, 5, {L}")
        k(f"v_lshlrev_b32 {vr(V_KA)}, 3, {T3}")
        k(f"v_xor_b32 {vr(V_KA)}, {vr(V_KA)}, {T0}")
        k(f"v_lshlrev_b32 {vr(V_KA)}, 4, {vr(V_KA)}")
        k(f"v_lshl_add_u32 {vr(V_KA)}, {T2}, 8, {vr(V_KA)}")
        for s in range(1, 8):
            k(f"v_xor_b32 {vr(V_KA+s)}, {s << 4}, {vr(V_KA)}")
        k(f"v_lshrrev_b32 {T2}, 2, {T0}")
        k(f"v_lshl_add_u32 {vr(VA0)}, {T3}, 2, {T2}")
        k(f"v_lshlrev_b32 {vr(VA0)}, 8, {vr(VA0)}")
        k(f"v_lshl_add_u32 {vr(VA0)}, {T2}, 6, {vr(VA0)}")
        k(f"v_and_b32 {T2}, 1, {T1}")
        k(f"v_lshl_add_u32 {vr(VA0)}, {T2}, 5, {vr(VA0)}")
        k(f"v_and_b32 {T2}, 2, {T0}")
        k(f"v_lshl_add_u32 {vr(VA0)}, {T2}, 3, {vr(VA0)}")
        k(f"v_and_b32 {T2}, 1, {T0}")
        k(f"v_lshl_add_u32 {vr(VA0)}, {T2}, 3, {vr(VA0)}")
        for T in range(1, 4):
            k(f"v_xor_b32 {vr(VA0+T)}, {T << 6}, {vr(VA0)}")

    def warm2():
        if cfg.warm2:
            k(f"s_lshl_b32 s33, {S_B}, 2"); k(f"s_add_u32 s33, s33, {S_W}"); k("s_lshl_b32 s33, s33, 12")
            for i in range(4):
                off = f" offset:{i*1024}" if i else ""
                k(f"buffer_load_dwordx4 {ar(144 + 4*i, 4)}, {vr(V_L16)}, {SWO}, s33 offen{off}", tag="warm")

    def xfrags(with_w):
        k.wait_vm("x")
        k("s_barrier")
        stamp(k, cfg, 1)
        for j in range(16):
            k(f"s_add_u32 {S_T0}, {S_ROT}, {j}")
            k(f"s_and_b32 {S_T0}, {S_T0}, 15")
            k(f"s_lshl_b32 {S_T0}, {S_T0}, 6")
            k(f"v_xor_b32 {vr(V_XT)}, {S_T0}, {vr(V_XB)}")
            for qh in range(2):
                off = f" offset:{qh*16384}" if qh else ""
                k(f"ds_read_b128 {ar(A_XB + (2*j+qh)*4, 4)}, {vr(V_XT)}{off}")
            if with_w and j == 3: w1_loads(k, 1, 1)
            if with_w and j == 9: w1_loads(k, 2, 2)
        k(f"v_lshlrev_b32 {T2}, 2, {T1}")
        k(f"v_xor_b32 {T2}, {T0}, {T2}")
        k(f"v_lshlrev_b32 {T2}, 4, {T2}")
        k(f"v_lshl_add_u32 {T2}, {T1}, 10, {T2}")
        k(f"s_lshl_b32 {S_T1}, {S_W}, 8")
        k(f"v_add_u32 {vr(V_WD)}, {S_T1}, {T2}")
        for t in range(1, 4):
            k(f"v_add_u32 {vr(V_WD+t)}, {t*3072}, {vr(V_WD)}")

    def qphase(typeA):
        setup_wq()
        if typeA:
            if cfg.warmA: warm1()
            if cfg.xpos == 0: setup_x()
            if cfg.prof: stamp(k, cfg, 4)
            for i_, (kind, c) in enumerate(ORDER[:min(cfg.nA, 8)]):
                emit_items(k, kv_items(cfg, kind, c, f"{kind}{c}"))
                if cfg.prof and i_ in (1, 3, 5, 7): stamp(k, cfg, {1: 5, 3: 6, 5: 7, 7: 8}[i_])
                if i_ == cfg.xpos - 1: setup_x()
            if cfg.xpos > min(cfg.nA, 8): setup_x()
            setup_rest()
            addr_calcs()
            w1_loads(k, 0, 0)
            xfrags(True)
        else:
            if cfg.bdelay:
                k(f"s_mov_b32 s33, {cfg.bdelay}")
                k.label("L_bd")
                k("s_sleep 8")
                k("s_sub_u32 s33, s33, 1")
                k("s_cmp_lg_u32 s33, 0")
                k("s_cbranch_scc1 L_bd")
            if cfg.warmB: warm1()
            if cfg.bfirst == "x":
                setup_x(); w1_loads(k, 0, 0)
            else:
                k(f"s_mov_b32 s32, s44"); k(f"s_mov_b32 s33, s45")
                k(f"s_mov_b32 s98, s44"); k(f"s_mov_b32 s99, s45") if False else None
                setup_x(); w1_loads(k, 0, 0)
            setup_rest()
            addr_calcs()
            xfrags(True)
        stamp(k, cfg, 2)
        if cfg.skew:
            lb = f"L_skew{int(typeA)}"
            k(f"s_mov_b32 s33, {S_W}")
            k.label(lb)
            k("s_cmp_eq_u32 s33, 0")
            k(f"s_cbranch_scc1 {lb}_d")
            k(f"s_sleep {cfg.skew}")
            k("s_sub_u32 s33, s33, 1")
            k(f"s_branch {lb}")
            k.label(lb + "_d")
        tail = [] if typeA else [it for kind, c in ORDER[:cfg.nB] for it in kv_items(cfg, kind, c, f"{kind}{c}")]
        dist = 3 if typeA else cfg.bdist
        for s in range(16):
            extra = []
            if s + dist < 16 and s + dist >= 3: extra += w1_items(s + dist, (s + dist) % NRAW)
            if s >= 13 and tail:
                n = 4 if s < 15 else 4
                extra += tail[:n]; tail = tail[n:]
            if typeA and s == 1 and cfg.nA > 8:
                def fr():
                    k.wait_lgkm_all(); k("s_barrier")
                extra += [[fr]] + [it for kind, c in ORDER[8:cfg.nA] for it in kv_items(cfg, kind, c, f"{kind}{c}")]
            if s == cfg.warm2_step and cfg.warm2: extra += [[warm2]]
            if cfg.burst:
                proj_step(k, s % NRAW, V_QD, lambda qh: ar(A_XB + (2*s+qh)*4, 4), s == 0, V_F, [])
                emit_items(k, extra)
            else:
                proj_step(k, s % NRAW, V_QD, lambda qh: ar(A_XB + (2*s+qh)*4, 4), s == 0, V_F, extra)
        if cfg.micro:
            k(f"v_mov_b32 v30, {S_C}"); k(f"v_mov_b32 v31, {S_C}")
            for i in range(32):
                k(f"v_pk_mul_f32 {vr(V_QD+2*i,2)}, {vr(V_QD+2*i,2)}, v[30:31]")
                if i % 8 == 7 and tail:
                    emit_items(k, tail[:1]); tail = tail[1:]
        else:
            for i in range(64):
                k(f"v_mul_f32 {vr(V_QD+i)}, {S_C}, {vr(V_QD+i)}")
                if i % 16 == 15 and tail:
                    emit_items(k, tail[:1]); tail = tail[1:]
        emit_items(k, tail)
        for r in range(4):
            X = V_RAW + 8*r; Y = X + 4
            for t in range(4):
                k(f"v_cvt_pk_bf16_f32 {vr(X+t)}, {vr(V_QD + ((2*t)*2+0)*4 + r)}, {vr(V_QD + ((2*t+1)*2+0)*4 + r)}")
                k(f"v_cvt_pk_bf16_f32 {vr(Y+t)}, {vr(V_QD + ((2*t)*2+1)*4 + r)}, {vr(V_QD + ((2*t+1)*2+1)*4 + r)}")
        for r in range(4):
            X = V_RAW + 8*r; Y = X + 4
            for t in range(4):
                k(f"v_permlane16_swap_b32 {vr(X+t)}, {vr(Y+t)}")
        for r in range(4):
            X = V_RAW + 8*r; Y = X + 4
            for t in range(4):
                k(f"v_accvgpr_write_b32 {ar(A_Q + 4*r + t)}, {vr(X+t)}")
                k(f"v_accvgpr_write_b32 {ar(A_Q + 4*(4+r) + t)}, {vr(Y+t)}")
        k.wait_lgkm_all()
        if typeA: k.wait_vm_all()

    k.save_state("q")
    k(f"s_cmp_eq_u32 {S_TYPE}, 1")
    k("s_cbranch_scc1 L_q1")
    qphase(True)
    k("s_branch L_qdone")
    k.label("L_q1")
    if cfg.hack2 == "Bexit": k("s_endpgm")
    k.restore_state("q")
    qphase(False)
    k.label("L_qdone")
    k("s_nop 3" if cfg.micro else "s_nop 15")
    if cfg.hack2:
        stamp(k, cfg, 3)
        stamps_out(k, cfg)
        k.label("L_end")
        k("s_endpgm")
        return k
    attention(k, cfg)
    oproj(k, cfg)
    stamp(k, cfg, 14)
    if cfg.wflags: tail_pre(k, cfg)
    if cfg.micro: tail_addr(k, cfg)
    assert cfg.pbf16
    if cfg.chk:
        k(f"s_lshl_b32 {S_T0}, {S_B}, 3")
        k(f"v_readfirstlane_b32 s51, v{V_NON}")
        k("s_nop 3")
        k.raw("    s_mov_b32 s50, 0x10000")
        k.raw("L_cn:")
        k.raw("    s_cmp_lg_u32 s51, 0")
        k.raw("    s_cbranch_scc1 L_cg")
        k.raw(f"    v_mov_b32 v2, {NONCE_OFF_EXPR(cfg)}")
        k.raw(f"    global_load_dword v3, v2, s[{S_DBG}:{S_DBG+1}] sc1")
        k.raw("    s_waitcnt vmcnt(0)")
        k.raw("    v_readfirstlane_b32 s51, v3")
        k.raw("    s_sub_u32 s50, s50, 1")
        k.raw("    s_cmp_lg_u32 s50, 0")
        k.raw("    s_cbranch_scc1 L_cn")
        k.raw("L_cg:")
    k(f"s_lshl_b32 {S_T0}, {S_W}, 13")
    k(f"v_add_u32 {vr(V_PO)}, {S_T0}, {vr(V_L16)}")
    for T in range(4):
        tb = 64 + 8*T
        for i in range(8):
            k(f"v_cvt_pk_bf16_f32 {vr(tb+i)}, {vr(V_OD + 16*T + 2*i)}, {vr(V_OD + 16*T + 2*i+1)}")
        k(f"s_mov_b32 {S_T1}, {T*2048}")
        k(f"buffer_store_dwordx4 {vr(tb,4)}, {vr(V_PO)}, {SP}, {S_T1} offen{cfg.stpol}")
        k(f"buffer_store_dwordx4 {vr(tb+4,4)}, {vr(V_PO)}, {SP}, {S_T1} offen offset:1024{cfg.stpol}")
        if cfg.chk:
            for rho in range(2):
                b = tb + 4*rho; ch = 96 + 2*T + rho
                k(f"v_bitop3_b32 {vr(ch)}, {vr(b)}, {vr(b+1)}, {vr(b+2)} bitop3:0x96")
                k(f"v_bitop3_b32 {vr(ch)}, {vr(ch)}, {vr(b+3)}, s51 bitop3:0x96")
    if cfg.chk:
        k(f"s_lshl_b32 {S_T0}, {S_W}, 11")
        k(f"v_add_u32 v3, {S_T0}, {vr(V_L16)}")
        k(f"s_mov_b32 {S_T1}, 32768")
        k(f"buffer_store_dwordx4 v[96:99], v3, {SP}, {S_T1} offen{cfg.stpol}")
        k(f"buffer_store_dwordx4 v[100:103], v3, {SP}, {S_T1} offen offset:1024{cfg.stpol}")
        k("s_barrier")
        stamp(k, cfg, 15)
        reduce_tail_c(k, cfg)
    elif cfg.wflags:
        reduce_tail_w(k, cfg)
    else:
        k.wait_vm_all()
        k("s_barrier")
        stamp(k, cfg, 15)
        reduce_tail(k, cfg)
    if cfg.dbgtime:
        k.wait_vm_all()
        k("s_memrealtime s[64:65]"); k("s_memtime s[66:67]")
        k("s_waitcnt lgkmcnt(0)")
        k("s_sub_u32 s64, s64, s60"); k("s_sub_u32 s66, s66, s62")
        k(f"s_and_b32 s33, {S_B}, 1")
        k("s_cmp_eq_u32 s33, 0")
        k("s_cselect_b32 s64, s64, s66")
        k(f"s_or_b32 s33, {S_HKV}, {S_W}")
        k("s_cmp_lg_u32 s33, 0")
        k("s_cbranch_scc1 L_end")
        k(f"s_lshl_b32 s33, {S_B}, 3"); k("s_add_u32 s33, s33, 4")
        k("v_mov_b32 v2, s33"); k("v_mov_b32 v3, s64")
        k("s_mov_b64 exec, 1")
        k(f"global_store_dword v2, v3, s[{S_DBG}:{S_DBG+1}]")
    stamps_out(k, cfg)
    k.label("L_end")
    k("s_endpgm")
    return k

def stamps_out(k, cfg):
    L = vr(V_LANE)
    if cfg.stamps:
        k.wait_vm_all()
        stamp(k, cfg, 13)
        NST = 16
        k(f"s_cmp_lg_u32 {S_W}, 0")
        k(f"s_cbranch_scc1 L_end")
        k(f"s_mul_i32 s58, s2, {NST*8}")
        k(f"s_add_u32 s58, s58, {STAMP_OFF}")
        k(f"s_add_u32 s56, s{S_WS}, s58"); k(f"s_addc_u32 s57, s{S_WS+1}, 0")
        order = list(range(16)) if cfg.prof2 else [0,1,2,3,4,5,6,7,8,10,9,14,15,12,13,11]
        if cfg.prof2: k("s_waitcnt lgkmcnt(0)")
        for i in range(NST):
            j = order[i]
            k(f"v_mov_b32 v{32+2*i}, s{60+2*j}"); k(f"v_mov_b32 v{33+2*i}, s{61+2*j}")
        k("v_mov_b32 v3, 0")
        k(f"v_cmp_eq_u32 vcc, 0, {L}")
        k("s_and_saveexec_b64 s[58:59], vcc")
        for i in range(NST // 2):
            k(f"global_store_dwordx4 v3, v[{32+4*i}:{35+4*i}], s[56:57] offset:{16*i}")

def tail_pre(k, cfg):
    L = vr(V_LANE)
    k(f"s_lshl_b32 {S_T0}, {S_B}, 3")
    k(f"v_mov_b32 v6, {S_T0}")
    k(f"s_lshl_b32 {S_T1}, {S_B}, 7"); k(f"s_add_u32 {S_T1}, {S_T1}, {FLAG_OFF}")
    k(f"s_lshr_b32 {S_T2}, {S_HKV}, 1")
    k(f"s_lshl_b32 {S_T2}, {S_T2}, 2"); k(f"s_add_u32 {S_T2}, {S_T2}, {S_T1}")
    k(f"v_lshl_add_u32 v20, {L}, 4, {S_T2}")
    k(f"s_lshl_b32 {S_T2}, {S_HKV}, 2"); k(f"s_add_u32 {S_T2}, {S_T2}, {S_W}")
    k(f"s_lshl_b32 {S_T3}, {S_T2}, 2"); k(f"s_add_u32 {S_T3}, {S_T3}, {S_T1}")
    k(f"v_mov_b32 v2, {S_T3}")
    k(f"s_lshl_b32 {S_T3}, {S_T2}, 10")
    k(f"v_add_u32 v4, {S_T3}, {vr(V_L16)}")
    k(f"v_and_b32 v5, 31, {L}"); k("v_lshlrev_b32 v5, 10, v5")
    k(f"v_lshrrev_b32 v3, 5, {L}"); k("v_lshl_add_u32 v5, v3, 4, v5")
    k(f"s_lshl_b32 {S_T3}, {S_T2}, 5")
    k(f"v_add_u32 v5, {S_T3}, v5")
    k(f"s_lshl_b32 s33, {S_B}, 19")
    k(f"s_add_u32 s50, s{S_WS}, s33"); k(f"s_addc_u32 s51, s{S_WS+1}, 0")
    srd(k, 8, "s50", "s51", 524288)
    k(f"s_lshl_b32 s33, {S_B}, 15")
    k(f"s_add_u32 s50, s{S_OUT}, s33"); k(f"s_addc_u32 s51, s{S_OUT+1}, 0")
    srd(k, 12, "s50", "s51", 32768)
    k(f"v_readfirstlane_b32 s51, v{V_NON}")

def reduce_tail_w(k, cfg):
    k.wait_vm_all()
    stamp(k, cfg, 15)
    k.raw("    s_mov_b64 exec, 1")
    k.raw("    s_mov_b32 s50, 0x10000")
    k.raw("L_npoll:")
    k.raw("    s_cmp_lg_u32 s51, 0")
    k.raw("    s_cbranch_scc1 L_ngot")
    k.raw(f"    global_load_dword v8, v6, s[{S_DBG}:{S_DBG+1}] sc1")
    k.raw("    s_waitcnt vmcnt(0)")
    k.raw("    v_readfirstlane_b32 s51, v8")
    k.raw("    s_sub_u32 s50, s50, 1")
    k.raw("    s_cmp_lg_u32 s50, 0")
    k.raw("    s_cbranch_scc1 L_npoll")
    k.raw("L_ngot:")
    k.raw("    v_mov_b32 v3, s51")
    k.raw(f"    global_store_dword v2, v3, s[{S_WS}:{S_WS+1}] sc1")
    k.raw("    s_mov_b64 exec, 0xff")
    k.raw("    s_mov_b32 s50, 0x10000")
    k.raw("L_poll:")
    k.raw(f"    global_load_dword v8, v20, s[{S_WS}:{S_WS+1}] sc1")
    k.raw("    s_waitcnt vmcnt(0)")
    k.raw("    v_cmp_ne_u32 vcc, s51, v8")
    k.raw("    s_nop 4")
    k.raw("    s_cmp_eq_u64 vcc, 0")
    k.raw("    s_cbranch_scc1 L_go")
    k.raw(f"    s_sleep {cfg.sleep}")
    k.raw("    s_sub_u32 s50, s50, 1")
    k.raw("    s_cmp_lg_u32 s50, 0")
    k.raw("    s_cbranch_scc1 L_poll")
    k.raw("L_go:")
    k.raw("    s_mov_b64 exec, -1")
    stamp(k, cfg, 12)
    final_sum(k, cfg)

def final_sum(k, cfg):
    for p in range(8):
        k(f"s_mov_b32 s52, {p*65536}")
        k(f"buffer_load_dwordx4 v[{32+4*p}:{35+4*p}], v4, s[8:11], s52 offen{cfg.ldpol}")
    k("s_mov_b32 s53, 0xffff0000")
    for p in range(8):
        for t in range(4):
            src = f"v{32+4*p+t}"
            if p == 0:
                k(f"v_lshlrev_b32 v{8+2*t}, 16, {src}")
                k(f"v_and_b32 v{9+2*t}, s53, {src}")
            else:
                k(f"v_lshlrev_b32 v{16+2*t}, 16, {src}")
                k(f"v_and_b32 v{17+2*t}, s53, {src}")
                k(f"v_add_f32 v{8+2*t}, v{8+2*t}, v{16+2*t}")
                k(f"v_add_f32 v{9+2*t}, v{9+2*t}, v{17+2*t}")
    k("v_cvt_pk_bf16_f32 v80, v8, v9"); k("v_cvt_pk_bf16_f32 v81, v10, v11")
    k("v_cvt_pk_bf16_f32 v82, v12, v13"); k("v_cvt_pk_bf16_f32 v83, v14, v15")
    k("v_permlane32_swap_b32 v80, v82")
    k("v_permlane32_swap_b32 v81, v83")
    k(f"buffer_store_dwordx4 v[80:83], v5, s[12:15], 0 offen{cfg.outpol}")

def NONCE_OFF_EXPR(cfg):
    return "s44"

def reduce_tail_c(k, cfg):
    L = vr(V_LANE)
    k(f"s_lshl_b32 {S_T1}, {S_B}, 7"); k(f"s_add_u32 {S_T1}, {S_T1}, {FLAG_OFF}")
    k(f"v_lshl_add_u32 v20, {L}, 2, {S_T1}")
    k(f"s_lshl_b32 {S_T2}, {S_HKV}, 2"); k(f"s_add_u32 {S_T2}, {S_T2}, {S_T1}")
    k(f"v_mov_b32 v2, {S_T2}")
    k(f"v_mov_b32 v3, s51")
    k(f"s_cmp_lg_u32 {S_W}, 0")
    k.raw("    s_cbranch_scc1 L_nosig")
    k.raw("    s_mov_b64 exec, 1")
    k.raw(f"    global_store_dword v2, v3, s[{S_WS}:{S_WS+1}] sc1")
    k.raw("    s_mov_b64 exec, 0xff")
    k.raw("    s_mov_b32 s50, 0x10000")
    k.raw("L_poll:")
    k.raw(f"    global_load_dword v8, v20, s[{S_WS}:{S_WS+1}] sc1")
    k.raw("    s_waitcnt vmcnt(0)")
    k.raw("    v_cmp_ne_u32 vcc, s51, v8")
    k.raw("    s_nop 4")
    k.raw("    s_cmp_eq_u64 vcc, 0")
    k.raw("    s_cbranch_scc1 L_go")
    k.raw(f"    s_sleep {cfg.sleep}")
    k.raw("    s_sub_u32 s50, s50, 1")
    k.raw("    s_cmp_lg_u32 s50, 0")
    k.raw("    s_cbranch_scc1 L_poll")
    k.raw("L_go:")
    k.raw("    s_mov_b64 exec, -1")
    k.raw("L_nosig:")
    k(f"s_lshl_b32 {S_T1}, {S_HKV}, 2"); k(f"s_add_u32 {S_T1}, {S_T1}, {S_W}")
    k(f"s_lshl_b32 {S_T2}, {S_T1}, 10")
    k(f"v_add_u32 v4, {S_T2}, {vr(V_L16)}")
    k(f"s_lshr_b32 {S_T2}, {S_T1}, 2"); k(f"s_lshl_b32 {S_T2}, {S_T2}, 10")
    k(f"s_and_b32 {S_T3}, {S_T1}, 3"); k(f"s_lshl_b32 {S_T3}, {S_T3}, 2")
    k(f"s_add_u32 {S_T2}, {S_T2}, {S_T3}"); k(f"s_add_u32 {S_T2}, {S_T2}, 32768")
    k(f"v_add_u32 v7, {S_T2}, {vr(V_L16)}")
    k(f"s_lshl_b32 s33, {S_B}, 19")
    k(f"s_add_u32 s32, s{S_WS}, s33"); k(f"s_addc_u32 s33, s{S_WS+1}, 0")
    srd(k, 8, "s32", "s33", 524288)
    k(f"s_lshl_b32 s33, {S_B}, 15")
    k(f"s_add_u32 s32, s{S_OUT}, s33"); k(f"s_addc_u32 s33, s{S_OUT+1}, 0")
    srd(k, 12, "s32", "s33", 32768)
    k(f"v_and_b32 v5, 31, {L}"); k("v_lshlrev_b32 v5, 10, v5")
    k(f"v_lshrrev_b32 v6, 5, {L}"); k("v_lshl_add_u32 v5, v6, 4, v5")
    k(f"s_lshl_b32 {S_T2}, {S_T1}, 5")
    k(f"v_add_u32 v5, {S_T2}, v5")
    k.wait_vm_all()
    k("s_barrier")
    stamp(k, cfg, 12)
    k.raw("    s_mov_b32 s50, 0x4000")
    k.raw("L_rld:")
    for p in range(8):
        k.raw(f"    s_mov_b32 s52, {p*65536}")
        k.raw(f"    buffer_load_dwordx4 v[{32+4*p}:{35+4*p}], v4, s[8:11], s52 offen{cfg.ldpol}")
        k.raw(f"    buffer_load_dword v{64+p}, v7, s[8:11], s52 offen{cfg.ldpol}")
    k.raw("    v_mov_b32 v9, 0")
    for p in range(8):
        k.raw(f"    s_waitcnt vmcnt({2*(7-p)})")
        k.raw(f"    v_bitop3_b32 v8, v{32+4*p}, v{33+4*p}, v{34+4*p} bitop3:0x96")
        k.raw(f"    v_bitop3_b32 v8, v8, v{35+4*p}, v{64+p} bitop3:0x96")
        k.raw(f"    v_xor_b32 v8, s51, v8")
        k.raw(f"    v_or_b32 v9, v9, v8")
    k.raw("    v_cmp_ne_u32 vcc, 0, v9")
    k.raw("    s_nop 4")
    k.raw("    s_cmp_eq_u64 vcc, 0")
    k.raw("    s_cbranch_scc1 L_rok")
    k.raw("    s_sub_u32 s50, s50, 1")
    k.raw("    s_cmp_lg_u32 s50, 0")
    k.raw("    s_cbranch_scc1 L_rld")
    k.raw("L_rok:")
    k("s_mov_b32 s53, 0xffff0000")
    for p in range(8):
        for t in range(4):
            src = f"v{32+4*p+t}"
            if p == 0:
                k(f"v_lshlrev_b32 v{8+2*t}, 16, {src}")
                k(f"v_and_b32 v{9+2*t}, s53, {src}")
            else:
                k(f"v_lshlrev_b32 v{16+2*t}, 16, {src}")
                k(f"v_and_b32 v{17+2*t}, s53, {src}")
                k(f"v_add_f32 v{8+2*t}, v{8+2*t}, v{16+2*t}")
                k(f"v_add_f32 v{9+2*t}, v{9+2*t}, v{17+2*t}")
    k("v_cvt_pk_bf16_f32 v80, v8, v9"); k("v_cvt_pk_bf16_f32 v81, v10, v11")
    k("v_cvt_pk_bf16_f32 v82, v12, v13"); k("v_cvt_pk_bf16_f32 v83, v14, v15")
    k("v_permlane32_swap_b32 v80, v82")
    k("v_permlane32_swap_b32 v81, v83")
    k(f"buffer_store_dwordx4 v[80:83], v5, s[12:15], 0 offen{cfg.outpol}")

def tail_addr(k, cfg):
    L = vr(V_LANE)
    k(f"s_lshl_b32 {S_T1}, {S_HKV}, 2"); k(f"s_add_u32 {S_T1}, {S_T1}, {S_W}")
    k(f"s_lshl_b32 {S_T2}, {S_T1}, 10")
    k(f"v_add_u32 v4, {S_T2}, {vr(V_L16)}")
    k(f"s_lshl_b32 s33, {S_B}, 19")
    k(f"s_add_u32 s50, s{S_WS}, s33"); k(f"s_addc_u32 s51, s{S_WS+1}, 0")
    srd(k, 8, "s50", "s51", 524288)
    k(f"s_lshl_b32 s33, {S_B}, 15")
    k(f"s_add_u32 s50, s{S_OUT}, s33"); k(f"s_addc_u32 s51, s{S_OUT+1}, 0")
    srd(k, 12, "s50", "s51", 32768)
    k(f"v_and_b32 v5, 31, {L}"); k("v_lshlrev_b32 v5, 10, v5")
    k(f"v_lshrrev_b32 v6, 5, {L}"); k("v_lshl_add_u32 v5, v6, 4, v5")
    k(f"s_lshl_b32 {S_T2}, {S_T1}, 5")
    k(f"v_add_u32 v5, {S_T2}, v5")

def reduce_tail(k, cfg):
    L = vr(V_LANE)
    k(f"s_lshl_b32 {S_T0}, {S_B}, 3")
    k(f"v_mov_b32 v6, {S_T0}")
    k(f"s_lshl_b32 {S_T1}, {S_B}, 7"); k(f"s_add_u32 {S_T1}, {S_T1}, {FLAG_OFF}")
    k(f"v_lshl_add_u32 v20, {L}, 2, {S_T1}")
    k(f"s_lshl_b32 {S_T2}, {S_HKV}, 2"); k(f"s_add_u32 {S_T2}, {S_T2}, {S_T1}")
    k(f"v_mov_b32 v2, {S_T2}")
    k(f"v_readfirstlane_b32 s51, v{V_NON}")
    k(f"s_cmp_lg_u32 {S_W}, 0")
    k.raw("    s_cbranch_scc1 L_nosig")
    k.raw("    s_mov_b64 exec, 1")
    k.raw("    s_mov_b32 s50, 0x10000")
    k.raw("L_npoll:")
    k.raw("    s_cmp_lg_u32 s51, 0")
    k.raw("    s_cbranch_scc1 L_ngot")
    k.raw(f"    global_load_dword v8, v6, s[{S_DBG}:{S_DBG+1}] sc1")
    k.raw("    s_waitcnt vmcnt(0)")
    k.raw("    v_readfirstlane_b32 s51, v8")
    k.raw("    s_sub_u32 s50, s50, 1")
    k.raw("    s_cmp_lg_u32 s50, 0")
    k.raw("    s_cbranch_scc1 L_npoll")
    k.raw("L_ngot:")
    k.raw("    v_mov_b32 v3, s51")
    k.raw(f"    global_store_dword v2, v3, s[{S_WS}:{S_WS+1}] sc1")
    k.raw("    s_mov_b64 exec, 0xff")
    k.raw("    s_mov_b32 s50, 0x10000")
    k.raw("L_poll:")
    k.raw(f"    global_load_dword v8, v20, s[{S_WS}:{S_WS+1}] sc1")
    k.raw("    s_waitcnt vmcnt(0)")
    k.raw("    v_cmp_ne_u32 vcc, s51, v8")
    k.raw("    s_nop 4")
    k.raw("    s_cmp_eq_u64 vcc, 0")
    k.raw("    s_cbranch_scc1 L_go")
    k.raw(f"    s_sleep {cfg.sleep}")
    k.raw("    s_sub_u32 s50, s50, 1")
    k.raw("    s_cmp_lg_u32 s50, 0")
    k.raw("    s_cbranch_scc1 L_poll")
    k.raw("L_go:")
    k.raw("    s_mov_b64 exec, -1")
    k.raw("L_nosig:")
    if not cfg.micro: tail_addr(k, cfg)
    k("s_barrier")
    stamp(k, cfg, 12)
    for p in range(8):
        k(f"s_mov_b32 s52, {p*65536}")
        k(f"buffer_load_dwordx4 v[{32+4*p}:{35+4*p}], v4, s[8:11], s52 offen{cfg.ldpol}")
    k("s_mov_b32 s53, 0xffff0000")
    for p in range(8):
        for t in range(4):
            src = f"v{32+4*p+t}"
            if p == 0:
                k(f"v_lshlrev_b32 v{8+2*t}, 16, {src}")
                k(f"v_and_b32 v{9+2*t}, s53, {src}")
            else:
                k(f"v_lshlrev_b32 v{16+2*t}, 16, {src}")
                k(f"v_and_b32 v{17+2*t}, s53, {src}")
                k(f"v_add_f32 v{8+2*t}, v{8+2*t}, v{16+2*t}")
                k(f"v_add_f32 v{9+2*t}, v{9+2*t}, v{17+2*t}")
    k("v_cvt_pk_bf16_f32 v80, v8, v9"); k("v_cvt_pk_bf16_f32 v81, v10, v11")
    k("v_cvt_pk_bf16_f32 v82, v12, v13"); k("v_cvt_pk_bf16_f32 v83, v14, v15")
    k("v_permlane32_swap_b32 v80, v82")
    k("v_permlane32_swap_b32 v81, v83")
    k(f"buffer_store_dwordx4 v[80:83], v5, s[12:15], 0 offen{cfg.outpol}")

def attention(k, cfg):
    Lr, AL, BM, T0, T1, T2 = vr(V_L), vr(V_AL), vr(V_BM), vr(V_T0), vr(V_T1), vr(V_T2)
    NM = lambda i: vr(V_NM + i)
    D = cfg.D; NFB = D + 1
    Sb = lambda c, t: V_S + (c & 1) * 32 + 16 * t
    Pb = lambda c, t: V_P + (c & 1) * 16 + 8 * t
    for T in range(4):
        k(f"v_add_u32 {vr(V_VA[1]+T)}, 65536, {vr(VA0+T)}")
        k(f"v_add_u32 {vr(V_VA[2]+T)}, 131072, {vr(VA0+T)}")
    units = []
    kadj = {}
    kb_cur = [0]
    def qk_units(c):
        slot = KSLOT[c]; kb = slot // 4
        if kb != kb_cur[0]:
            kadj[len(units)] = (kb - kb_cur[0]) * 65536; kb_cur[0] = kb
        for t in range(2):
            base = (slot - 4*kb) * SLOT + t * 8192
            for half in range(2):
                u = dict(reads=[], mf=[])
                for x in range(4):
                    sig = 4*half + x
                    u["reads"].append((lambda fb, x=x, sig=sig, base=base: f"ds_read_b128 {ar(fb+4*x,4)}, {vr(V_KA+sig)} offset:{base}"))
                    d = vr(Sb(c, t), 16)
                    cc = d if sig else ("0" if (c == 0 or (c == 1 and t == 0)) else vr(V_NM, 16))
                    u["mf"].append((lambda fb, x=x, sig=sig, d=d, cc=cc: f"v_mfma_f32_32x32x16_bf16 {d}, {ar(fb+4*x,4)}, {ar(A_Q+4*sig,4)}, {cc}"))
                units.append(u)
    def pv_units(c):
        slot = VSLOT[c]; vb = slot // 4
        for T in range(4):
            u = dict(reads=[], mf=[])
            for x in range(4):
                t = x >> 1; uu = x & 1
                off = (slot - 4*vb) * SLOT + (t * 32 + 16*uu) * 256
                va = V_VA[vb] + T
                u["reads"].append((lambda fb, x=x, va=va, off=off: f"ds_read_b64_tr_b16 {ar(fb+4*x,2)}, {vr(va)} offset:{off}"))
                u["reads"].append((lambda fb, x=x, va=va, off=off: f"ds_read_b64_tr_b16 {ar(fb+4*x+2,2)}, {vr(va)} offset:{off+2048}"))
                d = vr(V_O + 16*T, 16)
                cc = "0" if (c == 0 and x == 0) else d
                pf = vr(Pb(c, t) + 4*uu, 4)
                u["mf"].append((lambda fb, x=x, d=d, cc=cc, pf=pf: f"v_mfma_f32_32x32x16_bf16 {d}, {ar(fb+4*x,4)}, {pf}, {cc}"))
            units.append(u)
    qk0 = {}; pv0 = {}
    def addq(c): qk0[c] = len(units); qk_units(c)
    def addp(c): pv0[c] = len(units); pv_units(c)
    addq(0); addq(1)
    for s_ in range(1, 7): addp(s_ - 1); addq(s_ + 1)
    addp(6); addp(7)
    NU = len(units)
    vq = []
    def V(text, mu, idn=None, cost=None):
        if cost is None:
            cost = 8 if (isinstance(text, str) and (text.startswith("v_exp") or text.startswith("v_rcp"))) else 4
        vq.append((text, mu, idn, cost))
    def maxs(c, t):
        s = Sb(c, t); mu = qk0[c] + 2*t + 2
        if c == 1 and t == 0 and cfg.guard != "sum":
            for i in range(16): V(f"v_add_f32 {vr(s+i)}, {NM(0)}, {vr(s+i)}", mu)
        if t == 0:
            V(f"v_max_f32 {BM}, {vr(s)}, {vr(s+1)}", mu); rng = range(1, 8)
        else: rng = range(8)
        for i in rng: V(f"v_max3_f32 {BM}, {BM}, {vr(s+2*i)}, {vr(s+2*i+1)}", mu)
    def glue(c):
        mu = qk0[c] + 4
        V(f"v_mov_b32 {T0}, {BM}", mu)
        V(f"v_permlane32_swap_b32 {BM}, {T0}", mu)
        V(f"v_max_f32 {BM}, {BM}, {T0}", mu)
        if c == 0:
            for i in range(16): V(f"v_sub_f32 {NM(i)}, 0, {BM}", mu, idn=("negm" if i == 15 else None))
            V(f"v_mov_b32 {Lr}, 0", mu)
        else:
            def rare(c=c):
                lb = f"L_rg{c}"
                k(f"v_cmp_lt_f32 vcc, {cfg.thr:#x}, {BM}")
                k(f"s_mov_b32 {S_RF}, 0")
                k("s_nop 3")
                k("s_cmp_lg_u64 vcc, 0")
                k(f"s_cbranch_scc1 {lb}")
                k.cond_begin(lb)
                k(f"v_max_f32 {T0}, 0, {BM}")
                for t in range(2):
                    s = Sb(c, t)
                    for i in range(16): k(f"v_sub_f32 {vr(s+i)}, {vr(s+i)}, {T0}")
                for i in range(16): k(f"v_sub_f32 {NM(i)}, {NM(i)}, {T0}")
                k(f"v_sub_f32 {T0}, 0, {T0}")
                k(f"v_exp_f32 {AL}, {T0}")
                k(f"s_mov_b32 {S_RF}, 1")
                k(f"v_mul_f32 {Lr}, {Lr}, {AL}")
                k.cond_end()
            V(rare, mu, idn=f"glue{c}", cost=24)
    def exps(c, t):
        s = Sb(c, t); p = Pb(c, t)
        for i in range(8):
            a_, b_ = vr(s+2*i), vr(s+2*i+1)
            if c == 0:
                V(f"v_add_f32 {a_}, {NM(0)}, {a_}", 0)
                V(f"v_add_f32 {b_}, {NM(0)}, {b_}", 0)
            V(f"v_exp_f32 {a_}, {a_}", 0)
            V(f"v_exp_f32 {b_}, {b_}", 0)
            V(f"v_add_f32 {Lr}, {Lr}, {a_}", 0)
            V(f"v_add_f32 {Lr}, {Lr}, {b_}", 0)
            V(f"v_cvt_pk_bf16_f32 {vr(p+i)}, {a_}, {b_}", 0, idn=(f"exp{c}_{t}" if i == 7 else None))
    def rescale(c, mu):
        def f(c=c):
            lb = f"L_rs{c}"
            k(f"s_cmp_lg_u32 {S_RF}, 0")
            k(f"s_cbranch_scc1 {lb}")
            k.cond_begin(lb)
            for i in range(64): k(f"v_mul_f32 {vr(V_O+i)}, {AL}, {vr(V_O+i)}")
            k.cond_end()
        V(f, mu, idn=f"resc{c}", cost=8)
    def norm(T, mu):
        o = V_O + 16*T
        for u in range(2):
            for i in range(8): V(f"v_mul_f32 {vr(o+8*u+i)}, {AL}, {vr(o+8*u+i)}", mu)
            for t in range(4): V(f"v_cvt_pk_bf16_f32 {vr(o+8*u+t)}, {vr(o+8*u+2*t)}, {vr(o+8*u+2*t+1)}", mu)
            V(f"ds_write_b128 {T1}, {vr(o+8*u,4)} offset:{(2*T+u)*1024}", mu)
    SG = vr(V_SG)
    def exps_sum(c, t):
        s = Sb(c, t); p = Pb(c, t)
        for i in range(8):
            t0, t1 = vr(V_TE + 2*(i & 1)), vr(V_TE + 2*(i & 1) + 1)
            a_, b_ = vr(s+2*i), vr(s+2*i+1)
            if c == 0:
                V(f"v_add_f32 {t0}, {NM(0)}, {a_}", 0)
                V(f"v_add_f32 {t1}, {NM(0)}, {b_}", 0)
                a_, b_ = t0, t1
            V(f"v_exp_f32 {t0}, {a_}", 0)
            V(f"v_exp_f32 {t1}, {b_}", 0)
            if t == 0 and i == 0:
                V(f"v_add_f32 {SG}, {t0}, {t1}", 0)
            else:
                V(f"v_add_f32 {SG}, {SG}, {t0}", 0)
                V(f"v_add_f32 {SG}, {SG}, {t1}", 0)
            V(f"v_cvt_pk_bf16_f32 {vr(p+i)}, {t0}, {t1}", 0, idn=(f"exp{c}_{t}" if i == 7 else None))
    def adds10():
        s = Sb(1, 0)
        for i in range(16): V(f"v_add_f32 {vr(s+i)}, {NM(0)}, {vr(s+i)}", qk0[1] + 2)
    def check(c, mu):
        def f(c=c):
            lb = f"L_rg{c}"
            k(f"v_cmp_lt_f32 vcc, {cfg.sumthr:#x}, {SG}")
            k("s_nop 3")
            k("s_cmp_lg_u64 vcc, 0")
            k(f"s_cbranch_scc1 {lb}")
            k.cond_begin(lb)
            s0, s1 = Sb(c, 0), Sb(c, 1)
            k(f"v_max_f32 {BM}, {vr(s0)}, {vr(s0+1)}")
            for i in range(1, 8): k(f"v_max3_f32 {BM}, {BM}, {vr(s0+2*i)}, {vr(s0+2*i+1)}")
            for i in range(8): k(f"v_max3_f32 {BM}, {BM}, {vr(s1+2*i)}, {vr(s1+2*i+1)}")
            k(f"v_mov_b32 {T0}, {BM}")
            k(f"v_permlane32_swap_b32 {BM}, {T0}")
            k(f"v_max3_f32 {T0}, {BM}, {T0}, 0")
            for i in range(32): k(f"v_sub_f32 {vr(s0+i)}, {vr(s0+i)}, {T0}")
            if c < 7:
                n0 = Sb(c + 1, 0)
                for i in range(32): k(f"v_sub_f32 {vr(n0+i)}, {vr(n0+i)}, {T0}")
            for i in range(16): k(f"v_sub_f32 {NM(i)}, {NM(i)}, {T0}")
            k(f"v_sub_f32 {T0}, 0, {T0}")
            k(f"v_exp_f32 {AL}, {T0}")
            k("s_nop 0")
            k(f"v_mul_f32 {Lr}, {Lr}, {AL}")
            for i in range(64): k(f"v_mul_f32 {vr(V_O+i)}, {AL}, {vr(V_O+i)}")
            for t in range(2):
                s = Sb(c, t); p = Pb(c, t)
                for i in range(8):
                    t0, t1 = vr(V_TE), vr(V_TE + 1)
                    k(f"v_exp_f32 {t0}, {vr(s+2*i)}")
                    k(f"v_exp_f32 {t1}, {vr(s+2*i+1)}")
                    if t == 0 and i == 0:
                        k("s_nop 0")
                        k(f"v_add_f32 {SG}, {t0}, {t1}")
                    else:
                        k(f"v_add_f32 {SG}, {SG}, {t0}")
                        k(f"v_add_f32 {SG}, {SG}, {t1}")
                    k(f"v_cvt_pk_bf16_f32 {vr(p+i)}, {t0}, {t1}")
            k.cond_end()
            k(f"v_add_f32 {Lr}, {Lr}, {SG}")
        V(f, mu, idn=f"chk{c}", cost=24)
    phases = []
    def phase(u0, u1, fn):
        i0 = len(vq); fn(); phases.append((u0, u1, i0, len(vq)))
    phase(0, 4, lambda: maxs(0, 0))
    for p in range(8):
        u0 = 4 if p == 0 else 8*p
        u1 = 8 if p == 0 else (8*p + 8 if p < 7 else 60)
        def f(p=p):
            if cfg.guard == "sum":
                if p == 0:
                    maxs(0, 1); glue(0); exps_sum(0, 0); exps_sum(0, 1)
                    V(f"v_mov_b32 {Lr}, {SG}", 0)
                    adds10()
                else:
                    exps_sum(p, 0); exps_sum(p, 1)
                    check(p, pv0[p])
            else:
                maxs(p, 1); glue(p); exps(p, 0); exps(p, 1)
                if p < 7: maxs(p + 1, 0)
                if p >= 1: rescale(p, pv0[p-1] + 4)
            if p == 7:
                V(f"v_mov_b32 {T0}, {Lr}", 0)
                V(f"v_permlane32_swap_b32 {Lr}, {T0}", 0)
                V(f"v_add_f32 {Lr}, {Lr}, {T0}", 0)
                V(f"v_add_u32 {T1}, {S_W8K}, {vr(V_L16)}", 0)
                V(f"v_add_u32 {T1}, {OEX}, {T1}", 0)
        phase(u0, u1, f)
    def fin():
        V(f"v_rcp_f32 {AL}, {Lr}", 60)
        for T in range(4): norm(T, pv0[7] + T + 1)
    phase(60, 64, fin)
    req = {}
    req.setdefault(qk0[1] + 2, []).append("negm")
    if cfg.guard == "sum":
        for c in range(8):
            req.setdefault(pv0[c], []).append(f"exp{c}_1")
            if c >= 1: req[pv0[c]].append(f"chk{c}")
    else:
        for c in range(2, 8): req.setdefault(qk0[c], []).append(f"exp{c-2}_1"); req[qk0[c]].append(f"glue{c-1}")
        for c in range(8):
            req.setdefault(pv0[c], []).append(f"exp{c}_1")
            if c >= 1: req[pv0[c]].append(f"resc{c}")
    bar = {6: ["V0", "K2"], 14: ["V1", "K3"], 22: ["V2", "K4"], 30: ["V3", "K5"], 38: ["V4", "K6"], 46: ["V5", "K7"], 54: ["V6", "V7"], 59: []}
    fb = lambda n: A_FB + (n % NFB) * 16
    emitted = set(); qi = 0
    def emit_item():
        nonlocal qi
        t, mu, idn, cost = vq[qi]; qi += 1
        if callable(t): t()
        else: k(t)
        if idn: emitted.add(idn)
        return cost
    def emit_cycles(n_unit, cyc):
        c = 0
        while c < cyc and qi < len(vq) and vq[qi][1] <= n_unit:
            c += emit_item()
        return c
    def flush_until(idn, n_unit):
        while idn not in emitted:
            assert vq[qi][1] <= n_unit, (idn, vq[qi], n_unit)
            emit_item()
    k.wait_vm("K1")
    k("s_barrier")
    stamp(k, cfg, 3)
    rstamp(k, cfg, 1)
    for m in range(D):
        for rd in units[m]["reads"]: k(rd(fb(m)))
    ust = {} if cfg.prof else {6: 4, 14: 5, 22: 6, 30: 7, 38: 8, 54: 10}
    aq = []
    last_park = {}
    plan = [("kv", kd, c, mu) for kd, c, mu in cfg.kvplan if c != 99] + list(cfg.w2plan)
    plan.sort(key=lambda ev: ev[-1])
    ncond = [0]
    for ev in plan:
        if ev[0] == "kv":
            _, kind, c, mu = ev
            idx = ORDER.index((kind, c))
            if idx < cfg.nB: continue
            its = kv_items(cfg, kind, c, f"{kind}{c}")
            if idx < cfg.nA:
                def f(kind=kind, c=c, its=its):
                    ncond[0] += 1; lb = f"L_cd{ncond[0]}"
                    k(f"s_cmp_eq_u32 {S_TYPE}, 0")
                    k(f"s_cbranch_scc1 {lb}")
                    k.cond_begin(None, allow_vm=True)
                    emit_items(k, its)
                    k.cond_end()
                    k.label(lb)
                aq.append(("dma", f, mu))
            else:
                for g in its:
                    def f(kind=kind, c=c, g=g): emit_items(k, [g])
                    aq.append(("dma", f, mu))
        elif ev[0] == "w2":
            _, c, reg, mu = ev
            prev = last_park.get(reg)
            for h in range(2):
                for t in range(4):
                    def f(c=c, reg=reg, h=h, t=t, prev=prev):
                        if h == 0 and t == 0:
                            if prev is not None: k.need(pkr(prev, 0, 32))
                            k(f"s_add_u32 {S_T2}, {S_ROT}, {c}")
                            k(f"s_and_b32 {S_T2}, {S_T2}, 15")
                            k(f"s_lshl_b32 {S_T2}, {S_T2}, 15")
                        if t == 0:
                            k(f"s_add_u32 m0, {S_W8K}, {reg + h*4096}")
                            if h: k(f"s_add_u32 {S_T2}, {S_T2}, 16384")
                            else: k("s_nop 0")
                        off = f" offset:{t*1024}" if t else ""
                        k(f"buffer_load_dwordx4 {vr(V_WD+t)}, {SWO}, {S_T2} offen{off}{POLW[0]} lds", tag=f"w2_{c}")
                    aq.append(("dma", f, mu))
        else:
            _, c, reg, slot, mu = ev
            last_park[reg] = slot
            for T in range(4):
                for e in range(2):
                    for hh in range(2):
                        def f(c=c, reg=reg, slot=slot, T=T, e=e, hh=hh):
                            if T == 0 and e == 0 and hh == 0:
                                k.wait_vm(f"w2_{c}")
                                k(f"s_add_u32 {S_T1}, {S_W8K}, {reg}")
                            if e == 0 and hh == 0:
                                k(f"v_add_u32 {T2}, {S_T1}, {vr(VA0+T)}")
                            k(f"ds_read_b64_tr_b16 {pkr(slot, e*16 + 4*T + 2*hh, 2)}, {T2} offset:{16*e*256 + 2048*hh}")
                        aq.append(("lds", f, mu))
    extra = [0]; debt = [0]
    def carry_aux(m):
        if any(mu <= m for kd, f, mu in aq[ai[0]:ai[0]+1]): return 3
        return 0
    ai = [0]
    def emit_aux(n_unit, ndma, nlds):
        cd = cl_ = 0
        while ai[0] < len(aq):
            kind, f, mu = aq[ai[0]]
            if mu > n_unit: break
            if kind == "dma":
                if cd >= ndma: break
                cd += 1
            else:
                if cl_ >= nlds: break
                cl_ += 1
            f(); ai[0] += 1
        return cd, cl_
    for n, u in enumerate(units):
        if n in bar:
            if n in ust: stamp(k, cfg, ust[n])
            bi_ = sorted(bar).index(n)
            if bi_ < 7: rstamp(k, cfg, 2 + 2*bi_)
            for tg in bar[n]:
                while any(f.__defaults__ and tg == f"{f.__defaults__[0]}{f.__defaults__[1]}" for kd, f, mu in aq[ai[0]:]):
                    aq[ai[0]][1](); ai[0] += 1
                k.wait_vm(tg)
            k("s_barrier")
            if bi_ < 7: rstamp(k, cfg, 3 + 2*bi_)
        for idn in req.get(n, []): flush_until(idn, n)
        k.need(ar(fb(n), 16))
        if (n + D) in kadj:
            dl = kadj[n + D]
            for s in range(8):
                k(f"v_add_u32 {vr(V_KA+s)}, {dl & 0xffffffff:#x}, {vr(V_KA+s)}")
        nxt = units[n+D]["reads"] if n + D < NU else []
        nr = len(nxt)
        ph = [p for p in phases if p[0] <= n < p[1]]
        dleft, lleft = cfg.dma_per_unit, cfg.lds_per_unit
        for x in range(4):
            k(u["mf"][x](fb(n)))
            rds = nxt[(nr*x)//4:(nr*(x+1))//4]
            for rd in rds: k(rd(fb(n+D)))
            nd = 1 if (dleft > 0 and (x % max(1, 4 // cfg.dma_per_unit) == 0)) else 0
            nl = -(-lleft // (4 - x))
            cd, cl_ = emit_aux(n, nd, nl)
            dleft -= cd; lleft -= cl_
            if ph:
                u0, u1, i0, i1 = ph[0]
                rem = sum(v[3] for v in vq[qi:i1])
                fixed = 0; gaps_left = 0
                for m in range(n, u1):
                    nrm = len(units[m+D]["reads"]) if m + D < NU else 0
                    for y in range(4):
                        if m == n and y <= x: continue
                        fixed += 8 + 4 * ((nrm*(y+1))//4 - (nrm*y)//4) + carry_aux(m)
                        gaps_left += 1
                used = 8 + 4 * (len(rds) + cd + cl_) + extra[0]
                extra[0] = 0
                target = (rem + fixed + used) / (gaps_left + 1)
                budget = target - used + debt[0]
                c = 0
                while qi < i1 and vq[qi][1] <= n and c + vq[qi][3] / 2 <= budget:
                    c += emit_item()
                debt[0] = max(-16, min(16, budget - c)) if gaps_left else 0
    while qi < len(vq): emit_item()
    while ai[0] < len(aq):
        aq[ai[0]][1](); ai[0] += 1

def oproj(k, cfg):
    k(f"s_lshl_b32 {S_T0}, {S_B}, 3")
    k(f"v_mov_b32 {vr(V_T0)}, {S_T0}")
    k(f"global_load_dword v{V_NON}, {vr(V_T0)}, s[{S_DBG}:{S_DBG+1}] sc1", tag="nonce")
    for T in range(4):
        k(f"v_add_u32 {vr(V_WA+T)}, {S_W8K}, {vr(VA0+T)}")
        k(f"v_add_u32 {vr(V_WA+4+T)}, 65536, {vr(V_WA+T)}")
        k(f"v_add_u32 {vr(V_WA+8+T)}, 131072, {vr(V_WA+T)}")
    k.wait_lgkm_all()
    k("s_barrier")
    stamp(k, cfg, 9)
    resident = {}
    parked = {}
    for ev in cfg.w2plan:
        if ev[0] == "w2": resident[ev[1]] = ev[2]
        elif ev[0] == "park":
            parked[ev[1]] = ev[3]; del resident[ev[1]]
    streamed = [c for c in range(16) if c not in resident and c not in parked]
    order = list(resident.keys())
    pk = list(parked.keys()); st = list(streamed)
    while pk or st:
        if pk: order.append(pk.pop(0))
        if st: order.append(st.pop(0))
    region = dict(resident)
    free_regions = [r for r in ((P3, P1, P4, P0) if MAP2 else (P2, P3, P4, P0)) if r not in resident.values()]
    todo = list(streamed)
    opend = []
    def launch_streams(now=False):
        while free_regions and todo:
            c = todo.pop(0); r = free_regions.pop(0); region[c] = r
            if cfg.ospread and not now:
                opend.extend(w2_items(c, r))
            else:
                w2_dma(k, c, r)
    launch_streams(True)
    steps = [(c, e) for c in order for e in range(2)]
    def reads(i):
        c, e = steps[i]
        out = []
        if e == 0:
            out.append(f"s_add_u32 {S_T1}, {S_ROT}, {c}")
            out.append(f"s_and_b32 {S_T1}, {S_T1}, 15")
            out.append(f"s_lshl_b32 {S_T1}, {S_T1}, 11")
            out.append(f"s_add_u32 {S_T1}, {S_T1}, {OEX}")
            out.append(f"v_add_u32 {vr(V_OB)}, {S_T1}, {vr(V_L16)}")
        out.append(f"ds_read_b128 {vr(V_OBF + (i%3)*4, 4)}, {vr(V_OB)} offset:{e*1024}")
        if c not in parked:
            reg = region[c]; bi = reg // 65536
            for T in range(4):
                off = (reg - bi*65536) + 16*e*256
                fbv = V_OF + (i % 3)*16 + 4*T
                out.append(f"ds_read_b64_tr_b16 {vr(fbv,2)}, {vr(V_WA + 4*bi + T)} offset:{off}")
                out.append(f"ds_read_b64_tr_b16 {vr(fbv+2,2)}, {vr(V_WA + 4*bi + T)} offset:{off+2048}")
        return out
    def afrag(i, T):
        c, e = steps[i]
        if c in parked: return pkr(parked[c], e*16 + 4*T, 4)
        return vr(V_OF + (i % 3)*16 + 4*T, 4)
    def pre(i):
        c, e = steps[i]
        if e == 0 and c not in parked:
            while any(isinstance(x, tuple) and x[1] == f"w2_{c}" for g in opend for x in g):
                emit_items(k, opend[:1]); del opend[:1]
            k.wait_vm(f"w2_{c}")
    for i in range(2):
        pre(i)
        for x in reads(i): k(x)
    for i, (c, e) in enumerate(steps):
        k.need(vr(V_OBF + (i % 3)*4, 4))
        if c in parked: k.need(pkr(parked[c], e*16, 16))
        else: k.need(vr(V_OF + (i % 3)*16, 16))
        if e == 1 and c not in parked:
            free_regions.append(region[c]); launch_streams()
        nx = []
        if i + 2 < len(steps):
            pre(i + 2)
            nx = reads(i + 2)
        n = len(nx)
        for T in range(4):
            d = vr(V_OD + 16*T, 16)
            cc = "0" if i == 0 else d
            k(f"v_mfma_f32_32x32x16_bf16 {d}, {afrag(i, T)}, {vr(V_OBF + (i%3)*4, 4)}, {cc}")
            for x in nx[(n*T)//4:(n*(T+1))//4]: k(x)
            if opend:
                emit_items(k, opend[:1]); del opend[:1]

def build(cfg, path):
    k = gen(cfg, KN)
    t = k.finish()
    s = HEADER + "; @launch grid=(256,1,1) block=(256,1,1) lds=163840\n"
    s += '.amdgcn_target "amdgcn-amd-amdhsa--gfx950"\n' + t + "L_code_end:\n" + kernel_desc(KN, vgpr=512, sgpr=100, accum=256)
    open(path, "w").write(s)
    print(path, k.stats)

if __name__ == "__main__":
    build(Cfg(), "v5.s")
    build(Cfg(stamps=True), "v5_st.s")
    build(Cfg(stamps=True, stampop="s_memtime"), "v5_sc.s")
    build(Cfg(thr=f2u(-1.0e30) if False else 0), "v5_thr0.s")
```
